```python
import torch

def _softmax(x, axis=-1):
    return torch.softmax(x, dim=axis)

def _gelu(x):
    return torch.nn.functional.gelu(x, approximate='tanh')

def _silu(x):
    return torch.nn.functional.silu(x)

def _sigmoid(x):
    return torch.sigmoid(x)

def _layernorm(x, axis=-1, eps=1e-05):
    m = x.mean(dim=axis, keepdim=True)
    v = x.var(dim=axis, keepdim=True, unbiased=False)
    return (x - m) / torch.sqrt(v + eps)

def _scatter_add(tgt, idx, src, axis=0):
    return tgt.clone().index_add_(axis, idx, src)

def _segment_sum(src, seg, n):
    out = torch.zeros((n,) + src.shape[1:], dtype=src.dtype)
    return out.index_add_(0, seg, src)

def _pad(x, pw):
    flat = tuple((v for pair in reversed(pw) for v in pair))
    return torch.nn.functional.pad(x, flat)
kernel_name = 'adaLN_cond__spectral_fnet__geglu_ffn__prompt'

def setup_inputs():

    _w = lambda a: (lambda t: t.to(torch.bfloat16) if t.is_floating_point() else t)(torch.as_tensor(a))

    def _A_setup():
        B, S, D = (1, 2048, 1024)
        ns = torch.arange(S)[:, None] * torch.arange(S)[None, :]
        nd = torch.arange(D)[:, None] * torch.arange(D)[None, :]
        Ws_re = torch.cos(-2.0 * torch.pi * ns / S).to(float)
        Ws_im = torch.sin(-2.0 * torch.pi * ns / S).to(float)
        Wd_re = torch.cos(-2.0 * torch.pi * nd / D).to(float)
        Wd_im = torch.sin(-2.0 * torch.pi * nd / D).to(float)
        return {'x': _w((lambda *s: torch.randn(*s, dtype=torch.bfloat16) * 0.05)(B, S, D)), 'dft_seq_re': _w(Ws_re), 'dft_seq_im': _w(Ws_im), 'dft_hid_re': _w(Wd_re), 'dft_hid_im': _w(Wd_im)}
    _A_in = _A_setup()

    def _B_setup():
        B, S, D, F = (1, 2048, 1024, 3584)
        return {'x': _w((lambda *s: torch.randn(*s, dtype=torch.bfloat16) * 0.05)(B, S, D)), 'w_gate': _w((lambda *s: torch.randn(*s, dtype=torch.bfloat16) * 0.4)(D, F)), 'w_up': _w((lambda *s: torch.randn(*s, dtype=torch.bfloat16) * 0.4)(D, F)), 'w_down': _w((lambda *s: torch.randn(*s, dtype=torch.bfloat16) * 0.4)(F, D))}
    _B_in = _B_setup()
    return {'A_x': _A_in['x'], 'A_dft_seq_re': _A_in['dft_seq_re'], 'A_dft_seq_im': _A_in['dft_seq_im'], 'A_dft_hid_re': _A_in['dft_hid_re'], 'A_dft_hid_im': _A_in['dft_hid_im'], 'B_x': _B_in['x'], 'B_w_gate': _B_in['w_gate'], 'B_w_up': _B_in['w_up'], 'B_w_down': _B_in['w_down'], 'c': _w((lambda *s: torch.randn(*s, dtype=torch.bfloat16) * 0.1)(1, 1024) * 8.0), 'w_mod': _w((lambda *s: torch.randn(*s, dtype=torch.bfloat16) * 0.1)(1024, 6 * 1024) * 1024 ** (-0.5) * 8.0)}

def reference(A_x, A_dft_seq_re, A_dft_seq_im, A_dft_hid_re, A_dft_hid_im, B_x, B_w_gate, B_w_up, B_w_down, c, w_mod):

    def _A_ref(x, dft_seq_re, dft_seq_im, dft_hid_re, dft_hid_im):
        a = torch.einsum('bsd,ed->bse', x, dft_hid_re)
        b = torch.einsum('bsd,ed->bse', x, dft_hid_im)
        y = torch.einsum('ts,bse->bte', dft_seq_re, a) - torch.einsum('ts,bse->bte', dft_seq_im, b)
        return y

    def _B_ref(x, w_gate, w_up, w_down):
        return _gelu(x @ w_gate) * (x @ w_up) @ w_down
    x = A_x
    mod = (_silu(c) @ w_mod).reshape(c.shape[0], 6, 1, -1)
    sa, ca, ga, sb, cb, gb = (mod[:, 0].clone(), mod[:, 1].clone(), mod[:, 2].clone(), mod[:, 3].clone(), mod[:, 4].clone(), mod[:, 5].clone())
    h = _layernorm(x, axis=-1) * (1 + ca) + sa
    x = x + ga * _A_ref(h, A_dft_seq_re, A_dft_seq_im, A_dft_hid_re, A_dft_hid_im)
    h = _layernorm(x, axis=-1) * (1 + cb) + sb
    x = x + gb * _B_ref(h, B_w_gate, B_w_up, B_w_down)
    return x
```

```python
import re, struct

class Regs:
    def __init__(self, kind, start=0, limit=256):
        self.kind = kind; self.next = start; self.limit = limit; self.names = {}
    def alloc(self, n=1, align=1, name=None):
        if n >= 2 and align == 1: align = 2
        b = (self.next + align - 1) // align * align
        self.next = b + n
        assert self.next <= self.limit, f"out of {self.kind} regs ({name})"
        if name: self.names[name] = (b, n)
        return b
    def r(self, b, n=1):
        return f"{self.kind}{b}" if n == 1 else f"{self.kind}[{b}:{b+n-1}]"

def v(b, n=1): return f"v{b}" if n == 1 else f"v[{b}:{b+n-1}]"
def a(b, n=1): return f"a{b}" if n == 1 else f"a[{b}:{b+n-1}]"
def s(b, n=1): return f"s{b}" if n == 1 else f"s[{b}:{b+n-1}]"

class Asm:
    def __init__(self):
        self.lines = []
        self.uid = 0
    def __call__(self, line):
        for l in line.split("\n"):
            l = l.strip()
            if l: self.lines.append(l)
    def label(self, name): self.lines.append(name + ":")
    def newlabel(self, p="L"):
        self.uid += 1
        return f"{p}_{self.uid}"
    def nop(self, n):
        while n > 0:
            k = min(n, 16)
            self(f"s_nop {k-1}")
            n -= k
    def comment(self, c): self.lines.append("; " + c)
    def text(self):
        out = []
        for l in self.lines:
            if l.endswith(":") or l.startswith(".") or l.startswith(";"): out.append(l)
            else: out.append("    " + l)
        return "\n".join(out) + "\n"

_reg_re = re.compile(r"\b([vas])(?:(\d+)|\[(\d+):(\d+)\])")
def _regs(tok):
    out = []
    for m in _reg_re.finditer(tok):
        k = m.group(1)
        if m.group(2) is not None: out.append((k, int(m.group(2))))
        else: out += [(k, i) for i in range(int(m.group(3)), int(m.group(4)) + 1)]
    return out

TRANS = ("v_exp_f32", "v_log_f32", "v_rcp_f32", "v_rsq_f32", "v_sqrt_f32", "v_sin_f32", "v_cos_f32", "v_rcp_iflag_f32")

def _split_ops(l):
    l = l.split(";")[0].strip()
    parts = l.split(None, 1)
    op = parts[0]
    rest = parts[1] if len(parts) > 1 else ""
    ops = []; depth = 0; cur = ""
    for ch in rest:
        if ch == "[": depth += 1
        if ch == "]": depth -= 1
        if ch == "," and depth == 0: ops.append(cur.strip()); cur = ""
        else: cur += ch
    if cur.strip(): ops.append(cur.strip())
    return op, ops

class Ins:
    __slots__ = ("op", "ops", "w", "r", "kind", "line", "states", "passes", "srcC", "wsgpr", "dpp", "m0w", "vccw", "vccr", "store_data")

def parse(l):
    op, ops = _split_ops(l)
    I = Ins(); I.op = op; I.ops = ops; I.line = l; I.w = []; I.r = []; I.states = 1; I.passes = 0; I.srcC = []
    I.wsgpr = []; I.dpp = False; I.m0w = False; I.vccw = False; I.vccr = False; I.store_data = []
    base = op.replace("_e32", "").replace("_e64", "").replace("_dpp", "").replace("_sdwa", "")
    if op == "s_nop":
        I.kind = "nop"; I.states = int(ops[0], 0) + 1; return I
    if op.startswith("v_mfma"):
        I.kind = "mfma"
        I.passes = 8 if "32x32x16" in op else (4 if "16x16x32" in op else 16)
        I.w = _regs(ops[0]); I.r = _regs(ops[1]) + _regs(ops[2]) + _regs(ops[3]); I.srcC = _regs(ops[3]); return I
    if op.startswith("v_"):
        I.kind = "trans" if base in TRANS else "valu"
        I.dpp = ("_dpp" in op) or any(("row_" in o or "quad_perm" in o) for o in ops)
        if op.startswith("v_cmp"):
            d = ops[0]
            if d.startswith("vcc"): I.vccw = True
            else: I.wsgpr = _regs(d)
            for o in ops[1:]: I.r += _regs(o)
            return I
        if base in ("v_readfirstlane_b32", "v_readlane_b32"):
            I.kind = "readlane"; I.wsgpr = _regs(ops[0]); I.r = _regs(ops[1]) + (_regs(ops[2]) if len(ops) > 2 else []); return I
        if base.startswith("v_permlane") and "swap" in base:
            I.kind = "permlane"; I.w = _regs(ops[0]) + _regs(ops[1]); I.r = list(I.w); return I
        I.w = _regs(ops[0])
        k = 1
        if base in ("v_add_co_u32", "v_sub_co_u32", "v_addc_co_u32", "v_subb_co_u32", "v_subrev_co_u32"):
            if ops[1].startswith("vcc"): I.vccw = True
            else: I.wsgpr = _regs(ops[1])
            k = 2
        for o in ops[k:]:
            if o.startswith("vcc"): I.vccr = True
            I.r += _regs(o.split(" ")[0] if not o.startswith("-") and not o.startswith("abs") else o)
        if base in ("v_fmac_f32", "v_dot2c_f32_bf16", "v_pk_fmac_f16", "v_mac_f32"): I.r += I.w
        if base == "v_cndmask_b32" and len(ops) == 3: I.vccr = True
        return I
    if op.startswith("ds_"):
        I.kind = "ds"
        if op.startswith("ds_read") or op.startswith("ds_bpermute") or op.startswith("ds_swizzle") or op.startswith("ds_permute"):
            I.w = _regs(ops[0])
            for o in ops[1:]: I.r += _regs(o.split(" ")[0])
        else:
            for o in ops: I.r += _regs(o.split(" ")[0])
        return I
    if op.startswith("buffer_") or op.startswith("global_"):
        I.kind = "vmem"
        islds = any("lds" in o.split() for o in ops) or "_lds_" in op
        if islds: I.kind = "vmem_lds"
        if "load" in op and not islds:
            I.w = _regs(ops[0])
            for o in ops[1:]: I.r += _regs(o.split(" ")[0])
        else:
            for o in ops: I.r += _regs(o.split(" ")[0])
            if "store" in op and ("x4" in op or "x3" in op):
                I.store_data = _regs(ops[0]) if op.startswith("buffer_") else _regs(ops[1])
        return I
    if op.startswith("s_"):
        I.kind = "salu"
        if ops and ops[0] == "m0": I.m0w = True
        if ops and not op.startswith(("s_cmp", "s_cbranch", "s_branch", "s_waitcnt", "s_barrier", "s_setprio", "s_endpgm", "s_bitcmp", "s_sleep")):
            I.w = _regs(ops[0])
            for o in ops[1:]: I.r += _regs(o)
        else:
            for o in ops: I.r += _regs(o)
        return I
    I.kind = "other"
    return I

def check_hazards(lines, name=""):
    ins = [parse(l) for l in lines if not (l.endswith(":") or l.startswith(".") or l.startswith(";"))]
    errs = []
    n = len(ins)
    for i, P in enumerate(ins):
        dist = 0
        for j in range(i + 1, min(n, i + 40)):
            C = ins[j]
            def bad(need, why):
                if dist < need:
                    errs.append(f"{name}: need {need} have {dist}: [{P.line}] -> [{C.line}] ({why})")
            Pw = set(P.w)
            valu_like = P.kind in ("valu", "trans", "permlane")
            if valu_like and Pw:
                if C.kind == "mfma" and Pw & set(C.r): bad(2, "valu->mfma")
                if C.dpp and C.kind in ("valu", "trans") and Pw & set(C.r): bad(2, "valu->dpp")
                if C.kind == "readlane" and Pw & set(C.r): bad(1, "valu->readlane")
                if C.kind == "permlane" and Pw & set(C.r): bad(2, "valu->permlane")
                if P.kind == "trans" and C.kind in ("valu", "readlane", "permlane", "mfma") and Pw & set(C.r): bad(1, "trans->valu")
            if P.kind == "mfma":
                need = {8: 12, 4: 8, 16: 20}[P.passes]
                if C.kind == "mfma":
                    ab = set(_regs(C.ops[1]) + _regs(C.ops[2]))
                    if Pw & ab: bad(need, "mfma D->mfma AB")
                    if Pw & set(C.srcC) and set(C.srcC) != Pw: bad({8: 10, 4: 6, 16: 18}[P.passes], "mfma D->mfma C partial")
                    if Pw & set(C.srcC) and set(C.srcC) == Pw and C.passes != P.passes: bad({8: 10, 4: 6, 16: 18}[P.passes], "mfma D->C diff passes")
                elif C.kind in ("valu", "trans", "readlane", "permlane", "ds", "vmem", "vmem_lds"):
                    if Pw & (set(C.r) | set(C.w)): bad(need, "mfma D->valu/mem")
                if C.kind in ("valu", "trans", "permlane") and set(P.srcC) & set(C.w) and not (Pw & set(C.w)):
                    bad({8: 7, 4: 3, 16: 15}[P.passes], "mfma C WAR")
            if P.wsgpr or P.vccw:
                ws = set(P.wsgpr)
                if C.kind in ("valu", "trans") and ((ws & set(C.r)) or (P.vccw and C.vccr)): bad(2, "valu sgpr->valu const")
                if C.kind in ("vmem", "vmem_lds") and ws & set(C.r): bad(5, "valu sgpr->vmem")
                if C.kind == "readlane" and ws & set(C.r): bad(4, "valu sgpr->lane select")
                if C.kind == "salu" and ws & set(C.r): bad(1, "valu sgpr->salu (pad)")
            if P.m0w and C.kind == "vmem_lds":
                bad(1, "m0->lds dma")
            if P.store_data and C.kind in ("valu", "trans", "permlane") and set(P.store_data) & set(C.w): bad(2, "store data WAR")
            dist += C.states
            if dist > 24: break
    return errs

def bf16_bits(x):
    import numpy as np
    u = np.float32(x).view(np.uint32)
    u = int(u)
    r = (u + 0x7FFF + ((u >> 16) & 1)) >> 16
    return r & 0xFFFF

def f32_bits(x):
    return struct.unpack("<I", struct.pack("<f", x))[0]
```

```python
import sys
from common import *
def build(kernels, path, header_extra=""):
    out = []
    for k in kernels:
        ls = k[2] if isinstance(k[2], list) else [k[2]]
        out += ls
    out.append('.amdgcn_target "amdgcn-amd-amdhsa--gfx950"')
    out.append(".text")
    for k in kernels: out.append(k[0])
    out.append('.section .rodata,"a"')
    for k in kernels:
        out.append(".p2align 6")
        out.append(k[1])
    open(path, "w").write("\n".join(out) + "\n")
```

```python
WS_MODP1 = 0x000000
WS_MODP2 = 0x010000
WS_MODA  = 0x030000
WS_MODP3 = 0x018000
WS_XNF   = 0x100000
WS_ZF    = 0x500000
ZCH = 16448
WS_X1    = 0xA00000
WS_H2F   = 0xE00000
WS_ACT   = 0x1200000
WS_PART  = 0x2100000
WS_WDT   = 0x2100000
KARG = dict(x=0, wsre=8, wsim=16, wdre=24, wdim=32, bx=40, wg=48, wu=56, wd=64, c=72, wmod=80, out=88, dbg=96, ws=104)

def kernel_header(name):
    return f""".globl {name}
.p2align 8
.type {name},@function
{name}:
"""
def kernel_desc(name, nvgpr, nsgpr, accum, lds_static=0):
    return f""".amdhsa_kernel {name}
  .amdhsa_next_free_vgpr {nvgpr}
  .amdhsa_next_free_sgpr {nsgpr}
  .amdhsa_accum_offset {accum}
  .amdhsa_group_segment_fixed_size 0
  .amdhsa_kernarg_size 112
  .amdhsa_user_sgpr_count 2
  .amdhsa_user_sgpr_kernarg_segment_ptr 1
  .amdhsa_system_sgpr_workgroup_id_x 1
  .amdhsa_float_denorm_mode_32 3
.end_amdhsa_kernel
"""
```

```python
from asmlib import *
from common import *
from sched import Op, resolve
import math

def gen_gemm3b(name="gemm3_kernel", DT=2, nomfma=False, nodma=False, notok=False, noread=False, stamp=False, noepi=False):
    NW = 4; NT = 4; NL = 14
    NDMA = 8
    U = 4; R = 4; NST = 16; SPS = 2
    SLOT = 32768
    A = Asm()
    ACC0 = 32
    def acc(L, j): return ACC0 + (L * NT + j) * 4
    nacc = NL * NT * 4
    accum_offset = 256
    ar = Regs("a", 0, 256)
    WF = [[ar.alloc(4, 4) for t in range(NL)] for b in range(2)]
    TF = [[[ar.alloc(4, 4) for j in range(NT)] for ks in range(SPS)] for d in range(DT)]
    nvgpr = accum_offset + ar.next
    vRd = [[2 + h * 7 + t for t in range(7)] for h in range(2)]
    vDma = 16; vTok = 17; vSt = 19; vLane = 20
    sWsrd = 16; sTsrd = 20; sAsrd = 24
    sW = 28; sT = 29; sM0 = 30; sTmp = 31; sCnt = 32; sWv = 33; sOdd = 38; sSing = 39
    sTj = [56, 57, 58, 59]

    if stamp: A("s_memrealtime s[64:65]")
    A(f"s_cmp_ge_u32 s2, 256")
    A(f"s_cbranch_scc1 {name}_end")
    A(f"s_load_dwordx4 s[4:7], s[0:1], {KARG['wg']}")
    A(f"s_load_dwordx2 s[8:9], s[0:1], {KARG['ws']}")
    A(f"v_lshrrev_b32 v1, 6, v0")
    A(f"v_and_b32 v{vLane}, 63, v0")
    A(f"v_readfirstlane_b32 s{sWv}, v1")
    A(f"s_and_b32 s11, s2, 7")
    A(f"s_lshr_b32 s12, s2, 3")
    A(f"s_and_b32 s13, s12, 3")
    A(f"s_lshl_b32 s11, s11, 2")
    A(f"s_add_u32 s13, s13, s11")
    A(f"s_lshr_b32 s14, s2, 5")
    A(f"s_and_b32 s{sOdd}, s13, 1")
    A(f"s_lshr_b32 s15, s{sWv}, 1")
    vDma2 = 18
    A(f"v_lshrrev_b32 v2, 4, v{vLane}")
    A(f"v_bfe_u32 v3, v{vLane}, 1, 3")
    A(f"v_mul_u32_u24 v5, 7168, v2")
    A(f"v_and_b32 v6, 1, v{vLane}")
    A(f"v_lshlrev_b32 v6, 4, v6")
    A(f"v_add_u32 v5, v5, v6")
    A(f"v_mov_b32 v7, 0x40000000")
    for (dst, add) in ((vDma, 0), (vDma2, 4)):
        A(f"v_add_u32 v4, {add}, v2")
        A(f"v_xor_b32 v4, v3, v4")
        A(f"v_lshlrev_b32 v6, 5, v4")
        A(f"v_add_u32 v6, v5, v6")
        A(f"v_cmp_eq_u32 vcc, 7, v4")
        A.nop(2)
        A(f"v_cndmask_b32 v{dst}, v6, v7, vcc")
    A(f"v_lshlrev_b32 v{vTok}, 4, v{vLane}")
    A(f"v_mov_b32 v{vSt}, v{vTok}")
    A(f"v_lshrrev_b32 v22, 4, v{vLane}")
    A(f"v_bfe_u32 v24, v{vLane}, 2, 2")
    A(f"v_and_b32 v25, 3, v{vLane}")
    A(f"v_lshl_add_u32 v27, v22, 3, v24")
    A(f"v_lshlrev_b32 v26, 8, v27")
    A(f"v_lshl_add_u32 v26, v25, 3, v26")
    A(f"v_and_b32 v23, 1, v22")
    A(f"v_lshl_add_u32 v27, v23, 2, v24")
    for L in range(7):
        A(f"s_add_u32 s34, s{sOdd}, {L}")
        A(f"s_cmp_eq_u32 s34, 7")
        A(f"s_cselect_b32 s34, 0, s34")
        A(f"v_xor_b32 v28, s34, v27")
        A(f"v_lshl_add_u32 v{vRd[0][L]}, v28, 5, v26")
        A(f"v_add_u32 v{vRd[1][L]}, 0x10000, v{vRd[0][L]}")
    A(f"s_waitcnt lgkmcnt(0)")
    A(f"s_cmp_eq_u32 s15, 0")
    A(f"s_cselect_b32 s{sWsrd}, s4, s6")
    A(f"s_cselect_b32 s{sWsrd+1}, s5, s7")
    A(f"s_and_b32 s35, s{sWv}, 1")
    A(f"s_mul_i32 s36, s35, {NDMA*4*7168}")
    A(f"s_mul_i32 s37, s13, 224")
    A(f"s_add_u32 s36, s36, s37")
    A(f"s_add_u32 s{sWsrd}, s{sWsrd}, s36")
    A(f"s_addc_u32 s{sWsrd+1}, s{sWsrd+1}, 0")
    A(f"s_sub_u32 s{sWsrd+2}, {1024*7168}, s36")
    A(f"s_mov_b32 s{sWsrd+3}, 0x20000")
    A(f"s_lshl_b32 s{sM0}, s15, 14")
    A(f"s_mul_i32 s35, s35, {NDMA*1024}")
    A(f"s_add_u32 s{sM0}, s{sM0}, s35")
    A(f"s_lshl_b32 s35, s14, 4")
    A(f"s_lshl_b32 s36, s{sWv}, 2")
    A(f"s_add_u32 s35, s35, s36")
    A(f"s_lshl_b32 s36, s35, 15")
    A(f"s_add_u32 s36, s36, {WS_H2F}")
    A(f"s_add_u32 s{sTsrd}, s8, s36")
    A(f"s_addc_u32 s{sTsrd+1}, s9, 0")
    A(f"s_mov_b32 s{sTsrd+2}, {NT*32768}")
    A(f"s_mov_b32 s{sTsrd+3}, 0x20000")
    A(f"s_mul_i32 s36, s35, {112*1024}")
    A(f"s_add_u32 s36, s36, {WS_ACT}")
    A(f"s_add_u32 s{sAsrd}, s8, s36")
    A(f"s_addc_u32 s{sAsrd+1}, s9, 0")
    A(f"s_mov_b32 s{sAsrd+2}, {NT*112*1024}")
    A(f"s_mov_b32 s{sAsrd+3}, 0x20000")
    A(f"s_mul_i32 s37, s13, 7")
    A(f"s_add_u32 s40, s37, s{sOdd}")
    A(f"s_lshr_b32 s40, s40, 1")
    A(f"s_lshl_b32 s60, s40, 10")
    A(f"s_add_u32 s61, s60, {3*1024}")
    A(f"s_add_u32 s62, s60, {8}")
    A(f"s_sub_u32 s62, s62, 1024")
    A(f"s_cmp_eq_u32 s{sOdd}, 0")
    A(f"s_cselect_b32 s61, s61, s62")

    def dma_ops(tag, slot, k):
        o = []
        o.append(Op(f"s_add_u32 m0, s{sM0}, {slot*SLOT + k*1024}"))
        o.append(Op(f"s_add_u32 s{sTmp}, s{sW}, {k*4*7168}"))
        vd = vDma if ((k >> 1) & 1) == 0 else vDma2
        if nodma: o.append(Op("s_nop 0"))
        else: o.append(Op(f"buffer_load_dwordx4 v{vd}, s[{sWsrd}:{sWsrd+3}], s{sTmp} offen lds", vm=tag))
        return o
    def tok_op(ring, ks, j, tag):
        if notok: return Op("s_nop 0")
        return Op(f"buffer_load_dwordx4 {a(TF[ring][ks][j],4)}, v{vTok}, s[{sTsrd}:{sTsrd+3}], s{sTj[j]} offen offset:{ks*1024}", vm=tag)
    def set_T(stage):
        return [Op(f"s_mov_b32 s{sTj[j]}, {j*32768 + stage*2048}") for j in range(NT)]
    def inc_T():
        return [Op(f"s_add_u32 s{sTj[j]}, s{sTj[j]}, 2048") for j in range(NT)]

    pro = []
    pro.append(Op(f"s_mov_b32 s{sW}, 0"))
    for st in range(3):
        for k in range(NDMA):
            pro += dma_ops((lambda it, st=st, k=k: ('W', st, k)), st, k)
        if st == 0:
            pro += set_T(0)
            for ks in range(SPS):
                for j in range(NT):
                    pro.append(tok_op(0, ks, j, (lambda it, ks=ks, j=j: ('T', 0, ks, j))))
        pro.append(Op(f"s_add_u32 s{sW}, s{sW}, {64*7168}"))
    for d in range(1, DT):
        pro += set_T(d)
        for ks in range(SPS):
            if d == DT - 1 and ks == SPS - 1: continue
            for j in range(NT):
                pro.append(tok_op(d, ks, j, (lambda it, d=d, ks=ks, j=j: ('T', d, ks, j))))
    for r in range(nacc):
        pro.append(Op(f"v_mov_b32 v{ACC0+r}, 0"))
    pro.append(Op(f"s_mov_b32 s{sCnt}, 0"))
    if not nodma:
        pro.append(Op(wait_vm=lambda it: [('W', 0, k) for k in range(NDMA)]))
    pro.append(Op("s_barrier"))
    def rd_ops(buf, slot, ks):
        o = []
        for L in range(7):
            for mx in range(2):
                for q in range(2):
                    if noread: continue
                    o.append(Op(f"ds_read_b64_tr_b16 {a(WF[buf][mx*7+L]+2*q,2)}, v{vRd[slot>>1][L]} offset:{(slot&1)*SLOT + mx*16384 + ks*8192 + q*1024}"))
        return o
    pro += rd_ops(0, 0, 0)

    body = []
    for st in range(U):
        for ks in range(SPS):
            cur = (st * SPS + ks) & 1
            nst, nks = (st, ks + 1) if ks < SPS - 1 else (st + 1, 0)
            pst, pks = (st, ks - 1) if ks > 0 else (st - 1, SPS - 1)
            tk = []
            for j in range(NT):
                tk.append(tok_op((pst % DT), pks, j, (lambda it, pst=pst, pks=pks, j=j: ('T', it * U + pst + DT, pks, j))))
            tkinc = inc_T() if ks == 0 else []
            dm = []
            per = NDMA // SPS
            for k in range(ks * per, (ks + 1) * per):
                dm.append(dma_ops((lambda it, st=st, k=k: ('W', it * U + st + 3, k)), (st + 3) % R, k))
            dmend = [Op(f"s_add_u32 s{sW}, s{sW}, {64*7168}")] if ks == SPS - 1 else []
            rd = rd_ops(cur ^ 1, nst % R, nks)
            head = [Op("s_waitcnt lgkmcnt(0)")]
            if not notok:
                head.append(Op(wait_vm=lambda it, st=st, ks=ks: [('T', it * U + st, ks, j) for j in range(NT)]))
            mf = []
            for L in range(7):
                for mx in range(2):
                    for j in range(NT):
                        if nomfma: mf.append(Op("s_nop 0"))
                        else:
                            LL = mx * 7 + L
                            mf.append(Op(f"v_mfma_f32_16x16x32_bf16 {v(acc(LL,j),4)}, {a(WF[cur][LL],4)}, {a(TF[st%DT][ks][j],4)}, {v(acc(LL,j),4)}"))
            nm = len(mf)
            gaps = [[] for _ in range(nm)]
            if ks == SPS - 1:
                b = []
                if not nodma:
                    b.append(Op(wait_vm=lambda it, st=st: [('W', it * U + st + 1, k) for k in range(NDMA)]))
                b.append(Op("s_barrier"))
                gaps[0] += b
            g = 1
            for o in rd:
                gaps[g].append(o); g += 1
                if g % 7 == 0: g += 1
            holes = [7, 14, 21, 28, 35, 36, 38, 40, 42, 44, 46, 48, 50, 52]
            hi = 0
            for o in tk:
                gaps[holes[hi]].append(o); hi += 1
            gaps[holes[hi]] += tkinc; hi += 1
            for d in dm:
                gaps[holes[hi]] += d; hi += 1
            gaps[holes[hi]] += dmend
            body += head
            for g in range(nm):
                body.append(mf[g]); body += gaps[g]
    body.append(Op(f"s_add_u32 s{sCnt}, s{sCnt}, 1"))
    body.append(Op(f"s_cmp_lt_u32 s{sCnt}, {NST//U}"))
    pl, bl, _ = resolve(pro, body, NST // U)
    if stamp:
        A("s_memtime s[40:41]")
        A("s_memrealtime s[52:53]")
    for l in pl: A(l)
    if stamp: A("s_memtime s[42:43]")
    A(".p2align 6")
    A.label(f"{name}_loop")
    for l in bl: A(l)
    A(f"s_cbranch_scc1 {name}_loop")
    if stamp: A("s_memtime s[44:45]")
    A.nop(10)
    c0 = -2.0 * math.sqrt(2.0 / math.pi) * math.log2(math.e)
    c1 = c0 * 0.044715
    vC0, vC1, vONE = 2, 4, 6
    for r, val in ((vC0, c0), (vC1, c1), (vONE, 1.0)):
        A(f"v_mov_b32 v{r}, {hex(f32_bits(val))}")
        A(f"v_mov_b32 v{r+1}, {hex(f32_bits(val))}")
    T = 22
    def geglu(tiles):
        n = len(tiles)
        prs = [(g + 2 * p, u + 2 * p) for (g, u) in tiles for p in range(2)]
        for i, (g, u) in enumerate(prs): A(f"v_pk_mul_f32 {v(T+2*i,2)}, {v(g,2)}, {v(g,2)}")
        for i, (g, u) in enumerate(prs): A(f"v_pk_fma_f32 {v(T+2*i,2)}, {v(T+2*i,2)}, {v(vC1,2)}, {v(vC0,2)}")
        for i, (g, u) in enumerate(prs): A(f"v_pk_mul_f32 {v(T+2*i,2)}, {v(T+2*i,2)}, {v(g,2)}")
        for i in range(2 * len(prs)): A(f"v_exp_f32 v{T+i}, v{T+i}")
        for i, (g, u) in enumerate(prs): A(f"v_pk_mul_f32 {v(u,2)}, {v(u,2)}, {v(g,2)}")
        for i, (g, u) in enumerate(prs): A(f"v_pk_add_f32 {v(T+2*i,2)}, {v(T+2*i,2)}, {v(vONE,2)}")
        for i in range(2 * len(prs)): A(f"v_rcp_f32 v{T+i}, v{T+i}")
        A("s_nop 0")
        for i, (g, u) in enumerate(prs): A(f"v_pk_mul_f32 {v(u,2)}, {v(u,2)}, {v(T+2*i,2)}")
        return prs
    if not noepi:
        for j in range(NT):
            for P in range(3):
                L0, L1 = 2 * P, 2 * P + 1
                prs = geglu([(acc(L0, j), acc(7 + L0, j)), (acc(L1, j), acc(7 + L1, j))])
                o = 8 + 4 * (P & 1)
                for i, (g, u) in enumerate(prs): A(f"v_cvt_pk_bf16_f32 v{o+i}, v{u}, v{u+1}")
                A(f"s_add_u32 s{sTmp}, s60, {j*112*1024 + P*1024}")
                A(f"buffer_store_dwordx4 {v(o,4)}, v{vSt}, s[{sAsrd}:{sAsrd+3}], s{sTmp} offen")
            prs = geglu([(acc(6, j), acc(13, j))])
            o = 16
            o = 30
            for i, (g, u) in enumerate(prs): A(f"v_cvt_pk_bf16_f32 v{o+i}, v{u}, v{u+1}")
            A(f"s_add_u32 s{sTmp}, s61, {j*112*1024}")
            A(f"buffer_store_dwordx2 {v(o,2)}, v{vSt}, s[{sAsrd}:{sAsrd+3}], s{sTmp} offen")
    if stamp:
        A("s_waitcnt vmcnt(0)")
        A("s_memtime s[46:47]")
        A("s_memrealtime s[54:55]")
        A(f"s_load_dwordx2 s[48:49], s[0:1], {KARG['dbg']}")
        A("s_waitcnt lgkmcnt(0)")
        A(f"s_cmp_eq_u32 s{sWv}, 0")
        A(f"s_cbranch_scc0 {name}_end")
        A("v_mov_b32 v2, s64"); A("v_mov_b32 v3, s52"); A("v_mov_b32 v4, s54"); A("v_mov_b32 v5, s46")
        A("s_lshl_b32 s50, s2, 4"); A("s_add_u32 s50, s50, 0x3000000"); A("v_mov_b32 v6, s50")
        A("global_store_dwordx4 v6, v[2:5], s[8:9]")
        A(f"s_cmp_lt_u32 s2, 4")
        A(f"s_cbranch_scc0 {name}_end")
        A("s_sub_u32 s42, s42, s40"); A("s_sub_u32 s44, s44, s40"); A("s_sub_u32 s46, s46, s40")
        A("v_mov_b32 v2, s42"); A("v_mov_b32 v3, s44"); A("v_mov_b32 v4, s46"); A("s_sub_u32 s54, s54, s52"); A("v_mov_b32 v5, s54")
        A("s_lshl_b32 s50, s2, 4"); A("v_mov_b32 v6, s50")
        A("global_store_dwordx4 v6, v[2:5], s[48:49]")
    A.label(f"{name}_end")
    A("s_endpgm")
    errs = check_hazards(A.lines + bl, name)
    for e in errs: print("HAZARD", e)
    lds = R * SLOT
    text = kernel_header(name) + A.text()
    desc = kernel_desc(name, nvgpr, 70, accum_offset)
    launch = f"; @launch kernel={name} grid=(256,1,1) block=({NW*64},1,1) lds={lds}"
    return text, desc, launch
```

```python
from asmlib import *
from common import *
from sched import Op, resolve
import math

def gen_gemm4(name="gemm4_kernel", TN=64, SPS=4, R=4, DT=2, nomfma=False, nodma=False, notok=False, noread=False, stamp=False):
    NW = 4; NT = 2; NN = TN // 16
    KTOT = 3584
    NST = KTOT // (32 * SPS)
    U = R
    assert NST % U == 0 and U % DT == 0
    ROWB = TN * 2
    SLOT = 32 * SPS * ROWB
    RPI = 1024 // ROWB
    NDMA = (32 * SPS // RPI) // NW
    A = Asm()
    ACC0 = 32
    def acc(T, j): return ACC0 + (T * NT + j) * 4
    nacc = NN * NT * 4
    vr = Regs("v", ACC0 + nacc, 256)
    WF = [[vr.alloc(4, 4) for t in range(NN)] for b in range(2)]
    TF = [[[vr.alloc(4, 4) for j in range(NT)] for ks in range(SPS)] for d in range(DT)]
    nvgpr = vr.next; accum_offset = (nvgpr + 3) // 4 * 4
    vRd = [2 + t for t in range(NN)]
    vDma = 16; vTok = 17; vOut = 18; vLane = 20
    sWsrd = 16; sTsrd = 20; sOsrd = 24; sXsrd = 40
    sW = 28; sM0 = 30; sTmp = 31; sCnt = 32; sWv = 33
    sTj = [56, 57]
    LDS_GB = R * SLOT
    assert R * SLOT <= 65536 * 2

    if stamp: A("s_memrealtime s[64:65]")
    A(f"s_cmp_ge_u32 s2, 256")
    A(f"s_cbranch_scc1 {name}_end")
    A(f"s_load_dwordx2 s[4:5], s[0:1], {KARG['wd']}")
    A(f"s_load_dwordx2 s[6:7], s[0:1], {KARG['out']}")
    A(f"s_load_dwordx2 s[8:9], s[0:1], {KARG['ws']}")
    A(f"v_lshrrev_b32 v1, 6, v0")
    A(f"v_and_b32 v{vLane}, 63, v0")
    A(f"v_readfirstlane_b32 s{sWv}, v1")
    A(f"s_and_b32 s11, s2, 7")
    A(f"s_lshr_b32 s12, s2, 3")
    A(f"s_lshr_b32 s13, s11, 1")
    A(f"s_lshl_b32 s13, s13, 2")
    A(f"s_and_b32 s14, s12, 3")
    A(f"s_add_u32 s13, s13, s14")
    A(f"s_and_b32 s14, s11, 1")
    A(f"s_lshl_b32 s14, s14, 3")
    A(f"s_lshr_b32 s15, s12, 2")
    A(f"s_add_u32 s14, s14, s15")
    assert TN == 64
    GPR = ROWB // 16
    A(f"v_lshrrev_b32 v2, 3, v{vLane}")
    A(f"v_bfe_u32 v3, v{vLane}, 1, 2")
    A(f"v_bfe_u32 v4, v{vLane}, 4, 2")
    A(f"v_xor_b32 v3, v3, v4")
    A(f"v_lshlrev_b32 v5, 11, v2")
    A(f"v_lshl_add_u32 v5, v3, 5, v5")
    A(f"v_and_b32 v6, 1, v{vLane}")
    A(f"v_lshl_add_u32 v{vDma}, v6, 4, v5")
    A(f"v_lshlrev_b32 v{vTok}, 4, v{vLane}")
    A(f"v_lshrrev_b32 v22, 4, v{vLane}")
    A(f"v_bfe_u32 v24, v{vLane}, 2, 2")
    A(f"v_and_b32 v25, 3, v{vLane}")
    A(f"v_lshl_add_u32 v27, v22, 2, v24")
    A(f"v_lshlrev_b32 v26, 7, v27")
    A(f"v_lshl_add_u32 v26, v25, 3, v26")
    A(f"v_bfe_u32 v27, v27, 1, 2")
    for T in range(NN):
        A(f"v_xor_b32 v28, {T}, v27")
        A(f"v_lshl_add_u32 v{vRd[T]}, v28, 5, v26")
    A(f"v_and_b32 v23, 15, v{vLane}")
    A(f"v_lshlrev_b32 v{vOut}, 11, v23")
    A(f"v_and_b32 v28, 1, v22")
    A(f"v_lshl_add_u32 v{vOut}, v28, 5, v{vOut}")
    A(f"v_lshrrev_b32 v28, 1, v22")
    A(f"v_lshl_add_u32 v{vOut}, v28, 4, v{vOut}")
    A(f"s_waitcnt lgkmcnt(0)")
    A(f"s_mul_i32 s36, s{sWv}, {NDMA*RPI*2048}")
    A(f"s_lshl_b32 s37, s14, 7")
    A(f"s_add_u32 s36, s36, s37")
    A(f"s_add_u32 s{sWsrd}, s4, s36")
    A(f"s_addc_u32 s{sWsrd+1}, s5, 0")
    A(f"s_sub_u32 s{sWsrd+2}, {3584*2048}, s36")
    A(f"s_mov_b32 s{sWsrd+3}, 0x20000")
    A(f"s_mul_i32 s{sM0}, s{sWv}, {NDMA*1024}")
    A(f"s_lshl_b32 s35, s13, 3")
    A(f"s_lshl_b32 s36, s{sWv}, 1")
    A(f"s_add_u32 s35, s35, s36")
    A(f"s_mul_i32 s36, s35, {112*1024}")
    A(f"s_add_u32 s36, s36, {WS_ACT}")
    A(f"s_add_u32 s{sTsrd}, s8, s36")
    A(f"s_addc_u32 s{sTsrd+1}, s9, 0")
    A(f"s_mov_b32 s{sTsrd+2}, {NT*112*1024}")
    A(f"s_mov_b32 s{sTsrd+3}, 0x20000")
    A(f"s_lshl_b32 s36, s35, 15")
    A(f"s_lshl_b32 s37, s14, 7")
    A(f"s_add_u32 s36, s36, s37")
    A(f"s_add_u32 s{sOsrd}, s6, s36")
    A(f"s_addc_u32 s{sOsrd+1}, s7, 0")
    A(f"s_sub_u32 s{sOsrd+2}, {2048*2048}, s36")
    A(f"s_mov_b32 s{sOsrd+3}, 0x20000")
    A(f"s_add_u32 s37, s36, {WS_X1}")
    A(f"s_add_u32 s{sXsrd}, s8, s37")
    A(f"s_addc_u32 s{sXsrd+1}, s9, 0")
    A(f"s_sub_u32 s{sXsrd+2}, {2048*2048}, s36")
    A(f"s_mov_b32 s{sXsrd+3}, 0x20000")
    vG = TF[DT-1][SPS-1][0]
    A(f"s_lshl_b32 s37, s14, 11")
    A(f"s_add_u32 s37, s37, {WS_MODP3}")
    A(f"s_add_u32 s44, s8, s37")
    A(f"s_addc_u32 s45, s9, 0")
    A(f"v_lshlrev_b32 v28, 5, v{vLane}")
    gb_load = [Op(f"global_load_dwordx4 {v(vG,4)}, v28, s[44:45]", vm=lambda it: ('G', 0)),
               Op(f"global_load_dwordx4 {v(vG+4,4)}, v28, s[44:45] offset:16", vm=lambda it: ('G', 1))]
    gb_proc = [Op(wait_vm=lambda it: [('G', 0), ('G', 1)])]
    for t in [f"v_add_f32 v{vG}, v{vG}, v{vG+1}", f"v_add_f32 v{vG+2}, v{vG+2}, v{vG+3}",
              f"v_add_f32 v{vG+4}, v{vG+4}, v{vG+5}", f"v_add_f32 v{vG+6}, v{vG+6}, v{vG+7}",
              f"v_add_f32 v{vG}, v{vG}, v{vG+2}", f"v_add_f32 v{vG+4}, v{vG+4}, v{vG+6}",
              f"v_add_f32 v{vG}, v{vG}, v{vG+4}",
              f"v_cvt_pk_bf16_f32 v{vG}, v{vG}, v{vG}",
              f"v_and_b32 v{vG}, 0xffff0000, v{vG}",
              f"v_lshlrev_b32 v28, 2, v{vLane}",
              f"v_add_u32 v28, {LDS_GB}, v28",
              f"ds_write_b32 v28, v{vG}",
              f"s_waitcnt lgkmcnt(0)"]:
        gb_proc.append(Op(t))

    def dma_ops(tag, slot, k):
        o = []
        o.append(Op(f"s_add_u32 m0, s{sM0}, {slot*SLOT + k*1024}"))
        o.append(Op(f"s_add_u32 s{sTmp}, s{sW}, {k*RPI*2048}"))
        if nodma: o.append(Op("s_nop 0"))
        else: o.append(Op(f"buffer_load_dwordx4 v{vDma}, s[{sWsrd}:{sWsrd+3}], s{sTmp} offen lds", vm=tag))
        return o
    def tok_op(ring, ks, j, tag):
        if notok: return Op("s_nop 0")
        return Op(f"buffer_load_dwordx4 {v(TF[ring][ks][j],4)}, v{vTok}, s[{sTsrd}:{sTsrd+3}], s{sTj[j]} offen offset:{ks*1024}", vm=tag)
    assert SPS <= 4
    def set_T(stage): return [Op(f"s_mov_b32 s{sTj[j]}, {j*112*1024 + stage*SPS*1024}") for j in range(NT)]
    def inc_T(): return [Op(f"s_add_u32 s{sTj[j]}, s{sTj[j]}, {SPS*1024}") for j in range(NT)]
    STB = 32 * SPS * 2048
    pro = []
    pro += gb_load
    pro.append(Op(f"s_mov_b32 s{sW}, 0"))
    for st in range(R - 1):
        for k in range(NDMA):
            pro += dma_ops((lambda it, st=st, k=k: ('W', st, k)), st, k)
        if st < DT:
            pro += set_T(st)
            for ks in range(SPS):
                if st == DT - 1 and ks == SPS - 1: continue
                for j in range(NT):
                    pro.append(tok_op(st, ks, j, (lambda it, st=st, ks=ks, j=j: ('T', st, ks, j))))
        pro.append(Op(f"s_add_u32 s{sW}, s{sW}, {STB}"))
    assert DT <= R - 1
    for r in range(nacc): pro.append(Op(f"v_mov_b32 v{ACC0+r}, 0"))
    pro += gb_proc
    pro.append(Op(f"s_mov_b32 s{sCnt}, 0"))
    if not nodma: pro.append(Op(wait_vm=lambda it: [('W', 0, k) for k in range(NDMA)]))
    pro.append(Op("s_barrier"))
    assert R * SLOT <= 65536
    def rd_ops(buf, slot, ks):
        o = []
        for T in range(NN):
            for q in range(2):
                if noread: continue
                o.append(Op(f"ds_read_b64_tr_b16 {v(WF[buf][T]+2*q,2)}, v{vRd[T]} offset:{slot*SLOT + ks*32*ROWB + q*16*ROWB}"))
        return o
    pro += rd_ops(0, 0, 0)
    body = []
    for st in range(U):
        for ks in range(SPS):
            cur = (st * SPS + ks) & 1
            nst, nks = (st, ks + 1) if ks < SPS - 1 else (st + 1, 0)
            pst, pks = (st, ks - 1) if ks > 0 else (st - 1, SPS - 1)
            tk = [tok_op((pst % DT), pks, j, (lambda it, pst=pst, pks=pks, j=j: ('T', it * U + pst + DT, pks, j))) for j in range(NT)]
            tkinc = inc_T() if ks == 0 else []
            dm = []
            ks_list = [k for k in range(NDMA) if k * SPS // NDMA == ks] if NDMA >= SPS else ([ks * NDMA // SPS] if (ks * NDMA) % SPS == 0 else [])
            for k in ks_list:
                dm.append(dma_ops((lambda it, st=st, k=k: ('W', it * U + st + R - 1, k)), (st + R - 1) % R, k))
            dmend = [Op(f"s_add_u32 s{sW}, s{sW}, {STB}")] if ks == SPS - 1 else []
            rd = rd_ops(cur ^ 1, nst % R, nks)
            head = [Op("s_waitcnt lgkmcnt(0)")]
            if not notok:
                head.append(Op(wait_vm=lambda it, st=st, ks=ks: [('T', it * U + st, ks, j) for j in range(NT)]))
            mf = []
            for T in range(NN):
                for j in range(NT):
                    if nomfma: mf.append(Op("s_nop 0"))
                    else: mf.append(Op(f"v_mfma_f32_16x16x32_bf16 {v(acc(T,j),4)}, {v(WF[cur][T],4)}, {v(TF[st%DT][ks][j],4)}, {v(acc(T,j),4)}"))
            nm = len(mf)
            gaps = [[] for _ in range(nm)]
            if ks == SPS - 1:
                b = []
                if not nodma: b.append(Op(wait_vm=lambda it, st=st: [('W', it * U + st + 1, k) for k in range(NDMA)]))
                b.append(Op("s_barrier"))
                gaps[0] += b
            for i, o in enumerate(rd): gaps[min(i // 2, nm - 1)].append(o)
            g0 = nm // 2
            gaps[g0] += [tk[0]]; gaps[min(g0 + 1, nm - 1)] += [tk[1]] + tkinc
            for i, d in enumerate(dm): gaps[min(g0 + 2 + i, nm - 1)] += d
            gaps[nm - 1] += dmend
            body += head
            for g in range(nm):
                body.append(mf[g]); body += gaps[g]
    body.append(Op(f"s_add_u32 s{sCnt}, s{sCnt}, 1"))
    body.append(Op(f"s_cmp_lt_u32 s{sCnt}, {NST//U}"))
    pl, bl, _ = resolve(pro, body, NST // U)
    if stamp:
        A("s_memtime s[66:67]")
        A("s_memrealtime s[52:53]")
    for l in pl: A(l)
    if stamp: A("s_memtime s[68:69]")
    A(".p2align 6")
    A.label(f"{name}_loop")
    for l in bl: A(l)
    A(f"s_cbranch_scc1 {name}_loop")
    if stamp: A("s_memtime s[70:71]")
    X = TF[0][0][0]
    A("s_waitcnt vmcnt(0)")
    NP = NN // 2
    xr = {}
    k = 0
    for j in range(NT):
        for P in range(NP):
            xr[(j, P)] = X + 4 * k; k += 1
            A(f"s_mov_b32 s{sTmp}, {j*16*2048 + P*64}")
            A(f"buffer_load_dwordx4 {v(xr[(j,P)],4)}, v{vOut}, s[{sXsrd}:{sXsrd+3}], s{sTmp} offen")
    G = X + 4 * k
    A(f"v_lshrrev_b32 v22, 4, v{vLane}")
    A(f"v_and_b32 v23, 1, v22")
    A(f"v_lshlrev_b32 v23, 6, v23")
    A(f"v_lshrrev_b32 v22, 1, v22")
    A(f"v_lshl_add_u32 v23, v22, 5, v23")
    A(f"v_add_u32 v23, {LDS_GB}, v23")
    for P in range(NP):
        A(f"ds_read_b128 {v(G+8*P,4)}, v23 offset:{P*128}")
        A(f"ds_read_b128 {v(G+8*P+4,4)}, v23 offset:{P*128+16}")
    for j in range(NT):
        for P in range(NP):
            for r in range(4):
                A(f"v_permlane16_swap_b32 v{acc(2*P,j)+r}, v{acc(2*P+1,j)+r}")
    A("s_waitcnt vmcnt(0) lgkmcnt(0)")
    T0 = 22
    for j in range(NT):
        for P in range(NP):
            a0, a1 = acc(2 * P, j), acc(2 * P + 1, j)
            vals = [a0 + r for r in range(4)] + [a1 + r for r in range(4)]
            x = xr[(j, P)]
            for i in range(4):
                A(f"v_cvt_pk_bf16_f32 v{T0+i}, v{vals[2*i]}, v{vals[2*i+1]}")
            for i in range(4):
                A(f"v_lshlrev_b32 v{vals[2*i]}, 16, v{T0+i}")
                A(f"v_and_b32 v{vals[2*i+1]}, 0xffff0000, v{T0+i}")
            for i in range(8): A(f"v_mul_f32 v{vals[i]}, v{vals[i]}, v{G+8*P+i}")
            for i in range(4):
                A(f"v_cvt_pk_bf16_f32 v{T0+i}, v{vals[2*i]}, v{vals[2*i+1]}")
            for i in range(4):
                A(f"v_lshlrev_b32 v{vals[2*i]}, 16, v{T0+i}")
                A(f"v_and_b32 v{vals[2*i+1]}, 0xffff0000, v{T0+i}")
            for i in range(4):
                A(f"v_lshlrev_b32 v{T0+i}, 16, v{x+i}")
                A(f"v_and_b32 v{x+i}, 0xffff0000, v{x+i}")
            for i in range(4):
                A(f"v_add_f32 v{vals[2*i]}, v{vals[2*i]}, v{T0+i}")
                A(f"v_add_f32 v{vals[2*i+1]}, v{vals[2*i+1]}, v{x+i}")
            for i in range(4):
                A(f"v_cvt_pk_bf16_f32 v{x+i}, v{vals[2*i]}, v{vals[2*i+1]}")
            A(f"s_mov_b32 s{sTmp}, {j*16*2048 + P*64}")
            A(f"buffer_store_dwordx4 {v(x,4)}, v{vOut}, s[{sOsrd}:{sOsrd+3}], s{sTmp} offen")
    if stamp:
        A("s_waitcnt vmcnt(0)")
        A("s_memtime s[46:47]")
        A("s_memrealtime s[54:55]")
        A(f"s_load_dwordx2 s[48:49], s[0:1], {KARG['dbg']}")
        A("s_waitcnt lgkmcnt(0)")
        A(f"s_cmp_eq_u32 s{sWv}, 0")
        A(f"s_cbranch_scc0 {name}_end")
        A("v_mov_b32 v2, s64"); A("v_mov_b32 v3, s52"); A("v_mov_b32 v4, s54"); A("v_mov_b32 v5, s46")
        A("s_lshl_b32 s50, s2, 4"); A("s_add_u32 s50, s50, 0x3000000"); A("v_mov_b32 v6, s50")
        A("global_store_dwordx4 v6, v[2:5], s[8:9]")
        A(f"s_cmp_lt_u32 s2, 4")
        A(f"s_cbranch_scc0 {name}_end")
        A("s_sub_u32 s68, s68, s66"); A("s_sub_u32 s70, s70, s66"); A("s_sub_u32 s46, s46, s66")
        A("v_mov_b32 v2, s68"); A("v_mov_b32 v3, s70"); A("v_mov_b32 v4, s46"); A("s_sub_u32 s54, s54, s52"); A("v_mov_b32 v5, s54")
        A("s_lshl_b32 s50, s2, 4"); A("v_mov_b32 v6, s50")
        A("global_store_dwordx4 v6, v[2:5], s[48:49]")
    A.label(f"{name}_end")
    A("s_endpgm")
    errs = check_hazards(A.lines + bl, name)
    for e in errs: print("HAZARD", e)
    lds = R * SLOT + 512
    text = kernel_header(name) + A.text()
    desc = kernel_desc(name, nvgpr, 80, accum_offset)
    launch = f"; @launch kernel={name} grid=(256,1,1) block=({NW*64},1,1) lds={lds}"
    return text, desc, launch
```

```python
from asmlib import *
from common import *
from k_small import *

def gemv_issue(A, vW, vC, vTid, sWm, sC, s_cb, s_ks, colbase, vt0, vt1):
    A(f"v_lshrrev_b32 v{vt0}, 3, v{vTid}")
    A(f"s_lshl_b32 s90, s{s_ks}, 7")
    A(f"v_add_u32 v{vt0}, s90, v{vt0}")
    A(f"v_lshlrev_b32 v{vt1}, 1, v{vt0}")
    for i in range(4):
        A(f"global_load_ushort v{vC+i}, v{vt1}, s[{sC}:{sC+1}] offset:{i*64}")
    A(f"v_mul_u32_u24 v{vt0}, 12288, v{vt0}")
    A(f"v_and_b32 v{vt1}, 7, v{vTid}")
    A(f"v_lshl_add_u32 v{vt0}, v{vt1}, 4, v{vt0}")
    A(f"s_lshl_b32 s90, s{s_cb}, 7")
    A(f"s_add_u32 s90, s90, {colbase*2}")
    A(f"v_add_u32 v{vt0}, s90, v{vt0}")
    for i in range(4):
        A(f"global_load_dwordx4 {v(vW+4*i,4)}, v{vt0}, s[{sWm}:{sWm+1}]")
        if i < 3: A(f"v_add_u32 v{vt0}, {32*12288}, v{vt0}")

def gemv_compute(A, vW, vC, vAcc, vt, vTid, ldsbase):
    for i in range(4): silu_bf16(A, vC + i, vt)
    for i in range(4):
        for d in range(4):
            w = vW + 4 * i + d
            A(f"v_lshlrev_b32 v{vt}, 16, v{w}")
            A(f"v_and_b32 v{w}, 0xffff0000, v{w}")
            if i == 0:
                A(f"v_mul_f32 v{vAcc+2*d}, v{vC+i}, v{vt}")
                A(f"v_mul_f32 v{vAcc+2*d+1}, v{vC+i}, v{w}")
            else:
                A(f"v_fmac_f32 v{vAcc+2*d}, v{vC+i}, v{vt}")
                A(f"v_fmac_f32 v{vAcc+2*d+1}, v{vC+i}, v{w}")
    A(f"v_lshlrev_b32 v{vt}, 5, v{vTid}")
    A(f"v_add_u32 v{vt}, {ldsbase}, v{vt}")
    A(f"ds_write_b128 v{vt}, {v(vAcc,4)}")
    A(f"ds_write_b128 v{vt}, {v(vAcc+4,4)} offset:16")
    A(f"v_lshrrev_b32 v{vt}, 6, v{vTid}")
    A(f"v_lshlrev_b32 v{vt}, 11, v{vt}")
    A(f"v_and_b32 v{vW}, 63, v{vTid}")
    A(f"v_lshl_add_u32 v{vt}, v{vW}, 2, v{vt}")
    A(f"v_add_u32 v{vt}, {ldsbase}, v{vt}")
    A("s_waitcnt lgkmcnt(0)")
    for g in range(8): A(f"ds_read_b32 v{vAcc+g}, v{vt} offset:{g*256}")
    A("s_waitcnt lgkmcnt(0)")
    for (x, y) in ((0, 1), (2, 3), (4, 5), (6, 7), (0, 2), (4, 6), (0, 4)):
        A(f"v_add_f32 v{vAcc+x}, v{vAcc+x}, v{vAcc+y}")
    A(f"v_lshlrev_b32 v{vt}, 2, v{vTid}")
    A(f"v_add_u32 v{vt}, {ldsbase+8192}, v{vt}")
    A(f"ds_write_b32 v{vt}, v{vAcc}")

def gemv_finish(A, vAcc, vt, vTid, sWv, ldsbase, sWs, wsoff, s_cb, s_ks, lab):
    A(f"s_cmp_eq_u32 s{sWv}, 0")
    A(f"s_cbranch_scc0 {lab}")
    A(f"v_lshlrev_b32 v{vt}, 2, v{vTid}")
    A(f"v_add_u32 v{vt}, {ldsbase+8192}, v{vt}")
    for g in range(4): A(f"ds_read_b32 v{vAcc+g}, v{vt} offset:{g*256}")
    A("s_waitcnt lgkmcnt(0)")
    A(f"v_add_f32 v{vAcc}, v{vAcc}, v{vAcc+1}")
    A(f"v_add_f32 v{vAcc+2}, v{vAcc+2}, v{vAcc+3}")
    A(f"v_add_f32 v{vAcc}, v{vAcc}, v{vAcc+2}")
    A(f"s_lshl_b32 s90, s{s_cb}, 11")
    A(f"s_lshl_b32 s91, s{s_ks}, 2")
    A(f"s_add_u32 s90, s90, s91")
    A(f"s_add_u32 s90, s90, {wsoff}")
    A(f"v_lshlrev_b32 v{vt}, 5, v{vTid}")
    A(f"v_add_u32 v{vt}, s90, v{vt}")
    A(f"global_store_dword v{vt}, v{vAcc}, s[{sWs}:{sWs+1}]")
    A.label(lab)

def gen_l1(name="l1_kernel"):
    A = Asm()
    vTid = 0
    vX = 8
    vF = 24
    vW = 56
    vC = 72
    vAcc = 76
    vS = 84
    vT = 92
    vM = 100
    vR = 108
    sX, sC, sWm, sWs = 4, 8, 10, 6
    sWv = 12
    LDS_G = 0
    LDS_R = 9216
    A(f"s_cmp_ge_u32 s2, 256")
    A(f"s_cbranch_scc1 {name}_end")
    A(f"s_load_dwordx2 s[{sX}:{sX+1}], s[0:1], {KARG['x']}")
    A(f"s_load_dwordx4 s[{sC}:{sC+3}], s[0:1], {KARG['c']}")
    A(f"s_load_dwordx2 s[{sWs}:{sWs+1}], s[0:1], {KARG['ws']}")
    A(f"v_lshrrev_b32 v1, 6, v0")
    A(f"s_and_b32 s13, s2, 7")
    A(f"v_readfirstlane_b32 s{sWv}, v1")
    A(f"s_lshr_b32 s14, s2, 3")
    A(f"s_and_b32 s15, s14, 7")
    A(f"s_lshl_b32 s16, s13, 3")
    A(f"s_add_u32 s15, s15, s16")
    A(f"s_lshr_b32 s16, s14, 3")
    A(f"s_lshl_b32 s17, s16, 9")
    A(f"s_add_u32 s17, s17, s15")
    A(f"s_lshl_b32 s17, s17, 11")
    A(f"v_lshlrev_b32 v2, 3, v0")
    A(f"v_add_u32 v2, s17, v2")
    A(f"s_and_b32 s18, s2, 31")
    A(f"s_lshr_b32 s19, s2, 5")
    A("s_waitcnt lgkmcnt(0)")
    for j in range(8):
        A(f"global_load_dwordx2 {v(vX+2*j,2)}, v2, s[{sX}:{sX+1}]")
        if j < 7: A(f"v_add_u32 v2, {64*2048}, v2")
    gemv_issue(A, vW, vC, vTid, sWm, sC, 18, 19, 0, 3, 4)
    A("s_waitcnt vmcnt(8)")
    for j in range(8):
        for d in range(2):
            A(f"v_lshlrev_b32 v{vF+4*j+2*d}, 16, v{vX+2*j+d}")
            A(f"v_and_b32 v{vF+4*j+2*d+1}, 0xffff0000, v{vX+2*j+d}")
    for j in range(8):
        A(f"v_add_f32 v{vS+j}, v{vF+4*j}, v{vF+4*j+1}")
        A(f"v_add_f32 v{vT+j}, v{vF+4*j+2}, v{vF+4*j+3}")
    for j in range(8): A(f"v_add_f32 v{vS+j}, v{vS+j}, v{vT+j}")
    allreduce64(A, [vS + j for j in range(8)], [vT + j for j in range(8)])
    def cross_wave(slot):
        A(f"s_lshl_b32 s20, s{sWv}, 5")
        A(f"s_add_u32 s20, s20, {LDS_R + slot*128}")
        A(f"v_mov_b32 v5, s20")
        A(f"s_mov_b64 exec, 1")
        A(f"ds_write_b128 v5, {v(vS,4)}")
        A(f"ds_write_b128 v5, {v(vS+4,4)} offset:16")
        A(f"s_mov_b64 exec, -1")
        A("s_waitcnt lgkmcnt(0)")
        A("s_barrier")
        A(f"v_mov_b32 v5, {LDS_R + slot*128}")
        A(f"ds_read_b128 {v(vS,4)}, v5")
        A(f"ds_read_b128 {v(vS+4,4)}, v5 offset:16")
        A(f"ds_read_b128 {v(vT,4)}, v5 offset:32")
        A(f"ds_read_b128 {v(vT+4,4)}, v5 offset:48")
        A("s_waitcnt lgkmcnt(0)")
        for j in range(8): A(f"v_add_f32 v{vS+j}, v{vS+j}, v{vT+j}")
        A(f"ds_read_b128 {v(vT,4)}, v5 offset:64")
        A(f"ds_read_b128 {v(vT+4,4)}, v5 offset:80")
        A("s_waitcnt lgkmcnt(0)")
        for j in range(8): A(f"v_add_f32 v{vS+j}, v{vS+j}, v{vT+j}")
        A(f"ds_read_b128 {v(vT,4)}, v5 offset:96")
        A(f"ds_read_b128 {v(vT+4,4)}, v5 offset:112")
        A("s_waitcnt lgkmcnt(0)")
        for j in range(8): A(f"v_add_f32 v{vS+j}, v{vS+j}, v{vT+j}")
    cross_wave(0)
    inv = hex(f32_bits(1.0 / 1024))
    for j in range(8): A(f"v_mul_f32 v{vM+j}, {inv}, v{vS+j}")
    for j in range(8):
        for c in range(4):
            A(f"v_sub_f32 v{vT+c}, v{vF+4*j+c}, v{vM+j}")
        A(f"v_mul_f32 v{vS+j}, v{vT}, v{vT}")
        for c in range(1, 4): A(f"v_fmac_f32 v{vS+j}, v{vT+c}, v{vT+c}")
    allreduce64(A, [vS + j for j in range(8)], [vT + j for j in range(8)])
    cross_wave(1)
    for j in range(8):
        A(f"v_mul_f32 v{vS+j}, {inv}, v{vS+j}")
    for j in range(8): round_bf16(A, vS + j, vS + j)
    for j in range(8): A(f"v_add_f32 v{vS+j}, {hex(f32_bits(1e-5))}, v{vS+j}")
    for j in range(8): round_bf16(A, vS + j, vS + j)
    for j in range(8): A(f"v_sqrt_f32 v{vS+j}, v{vS+j}")
    A("s_nop 0")
    for j in range(8): round_bf16(A, vS + j, vS + j)
    for j in range(8): A(f"v_rcp_f32 v{vR+j}, v{vS+j}")
    for j in range(8): round_bf16(A, vM + j, vM + j)
    for j in range(8):
        for c in range(4): A(f"v_sub_f32 v{vF+4*j+c}, v{vF+4*j+c}, v{vM+j}")
    for j in range(8):
        for d in range(2):
            A(f"v_cvt_pk_bf16_f32 v{vT+d}, v{vF+4*j+2*d}, v{vF+4*j+2*d+1}")
        for d in range(2):
            A(f"v_lshlrev_b32 v{vF+4*j+2*d}, 16, v{vT+d}")
            A(f"v_and_b32 v{vF+4*j+2*d+1}, 0xffff0000, v{vT+d}")
        for c in range(4): A(f"v_mul_f32 v{vF+4*j+c}, v{vF+4*j+c}, v{vR+j}")
    for c in range(4):
        for p in range(4):
            A(f"v_cvt_pk_bf16_f32 v{vX+4*c+p}, v{vF+4*(2*p)+c}, v{vF+4*(2*p+1)+c}")
    A(f"v_lshrrev_b32 v2, 5, v0")
    A(f"v_lshlrev_b32 v2, 19, v2")
    A(f"v_and_b32 v3, 7, v0")
    A(f"v_lshl_add_u32 v2, v3, 16, v2")
    A(f"v_bfe_u32 v3, v0, 3, 2")
    A(f"v_lshl_add_u32 v2, v3, 4, v2")
    A(f"s_lshr_b32 s20, s15, 3")
    A(f"s_lshl_b32 s20, s20, 11")
    A(f"s_lshr_b32 s21, s16, 1")
    A(f"s_lshl_b32 s21, s21, 10")
    A(f"s_add_u32 s20, s20, s21")
    A(f"s_and_b32 s21, s16, 1")
    A(f"s_lshl_b32 s21, s21, 9")
    A(f"s_add_u32 s20, s20, s21")
    A(f"s_and_b32 s21, s15, 7")
    A(f"s_lshl_b32 s21, s21, 6")
    A(f"s_add_u32 s20, s20, s21")
    A(f"s_add_u32 s20, s20, {WS_XNF}")
    A(f"v_add_u32 v2, s20, v2")
    for c in range(4):
        A(f"global_store_dwordx4 v2, {v(vX+4*c,4)}, s[{sWs}:{sWs+1}]")
        if c < 3: A(f"v_add_u32 v2, 16384, v2")
    A("s_waitcnt vmcnt(4)")
    gemv_compute(A, vW, vC, vAcc, 5, vTid, LDS_G)
    A("s_waitcnt lgkmcnt(0)")
    A("s_barrier")
    gemv_finish(A, vAcc, 5, vTid, sWv, LDS_G, sWs, WS_MODP1, 18, 19, f"{name}_g")
    A.label(f"{name}_end")
    A("s_endpgm")
    for e in check_hazards(A.lines, name): print("HAZARD", e)
    return (kernel_header(name) + A.text(), kernel_desc(name, 120, 96, 120),
            f"; @launch kernel={name} grid=(256,1,1) block=(256,1,1) lds={LDS_R + 256}")
```

```python
from asmlib import *
from common import *
from k_small import *

def gen_l2(name="l2_kernel"):
    A = Asm()
    vX = 8
    vW1 = 16
    vW3 = 32
    vD1 = 64
    vTw = 96
    vDA = 96
    vD3 = 64
    vD4 = 80
    vG = 128
    vC = 144
    vAcc = 148
    vM = 156
    vK = 160
    sWs, sC, sWm = 6, 8, 10
    sWv = 12
    PITCH = 272
    LDS_B = 0
    LDS_G = 34816
    lds = LDS_G + 16384 + 1024
    A(f"s_cmp_ge_u32 s2, 256")
    A(f"s_cbranch_scc1 {name}_end")
    A(f"s_load_dwordx4 s[{sC}:{sC+3}], s[0:1], {KARG['c']}")
    A(f"s_load_dwordx2 s[{sWs}:{sWs+1}], s[0:1], {KARG['ws']}")
    A(f"s_getpc_b64 s[4:5]")
    A.label(f"{name}_pc")
    A(f"s_add_u32 s4, s4, tab_W1-{name}_pc")
    A(f"s_addc_u32 s5, s5, 0")
    A(f"v_lshrrev_b32 v1, 6, v0")
    A(f"v_and_b32 v2, 63, v0")
    A(f"v_readfirstlane_b32 s{sWv}, v1")
    A(f"s_and_b32 s13, s2, 7")
    A(f"s_lshr_b32 s14, s2, 3")
    A(f"v_lshlrev_b32 v3, 4, v2")
    for f in range(4):
        A(f"global_load_dwordx4 {v(vW1+4*f,4)}, v3, s[4:5] offset:{f*1024}")
    A(f"s_and_b32 s15, s{sWv}, 1")
    A(f"s_lshl_b32 s16, s15, 13")
    A(f"s_add_u32 s16, s16, 4096")
    A(f"v_add_u32 v4, s16, v3")
    for f in range(8):
        A(f"global_load_dwordx4 {v(vW3+4*f,4)}, v4, s[4:5] offset:{(f&3)*1024}")
        if f == 3: A(f"v_add_u32 v4, 4096, v4")
    A("s_waitcnt lgkmcnt(0)")
    A(f"s_lshl_b32 s16, s13, 5")
    A(f"s_add_u32 s16, s16, s14")
    A(f"s_lshl_b32 s16, s16, 14")
    A(f"s_lshl_b32 s17, s{sWv}, 11")
    A(f"s_add_u32 s16, s16, s17")
    A(f"s_add_u32 s16, s16, {WS_XNF}")
    A(f"v_add_u32 v4, s16, v3")
    A(f"global_load_dwordx4 {v(vX,4)}, v4, s[{sWs}:{sWs+1}]")
    A(f"global_load_dwordx4 {v(vX+4,4)}, v4, s[{sWs}:{sWs+1}] offset:1024")
    A(f"v_lshrrev_b32 v4, 5, v2")
    A(f"v_lshlrev_b32 v4, 10, v4")
    A(f"v_bfe_u32 v5, v2, 3, 2")
    A(f"v_lshl_add_u32 v4, v5, 5, v4")
    A(f"s_lshl_b32 s16, s13, 7")
    A(f"s_add_u32 s16, s16, s14")
    A(f"v_add_u32 v4, s16, v4")
    A(f"v_lshlrev_b32 v4, 3, v4")
    A(f"v_and_b32 v5, 7, v2")
    A(f"v_add_u32 v4, v4, v5")
    A(f"v_lshlrev_b32 v4, 2, v4")
    A(f"v_add_u32 v4, {WS_MODP1}, v4")
    A(f"global_load_dword v{vM}, v4, s[{sWs}:{sWs+1}]")
    A(f"s_cmp_lt_u32 s2, 192")
    A(f"s_cselect_b32 s22, 1, 0")
    A(f"s_cbranch_scc0 {name}_nog1")
    A(f"s_cmp_ge_u32 s14, 12")
    A(f"s_cselect_b32 s19, 1, 0")
    A(f"s_mul_i32 s18, s19, 12")
    A(f"s_sub_u32 s18, s14, s18")
    A(f"s_mul_i32 s20, s13, 12")
    A(f"s_add_u32 s18, s18, s20")
    A(f"v_lshrrev_b32 v4, 2, v0")
    A(f"s_lshl_b32 s20, s19, 9")
    A(f"v_add_u32 v4, s20, v4")
    A(f"v_lshlrev_b32 v5, 1, v4")
    for i in range(4):
        A(f"global_load_ushort v{vC+i}, v5, s[{sC}:{sC+1}] offset:{i*256}")
    A(f"v_mul_u32_u24 v4, 12288, v4")
    A(f"v_and_b32 v5, 3, v0")
    A(f"v_lshl_add_u32 v4, v5, 4, v4")
    A(f"s_lshl_b32 s20, s18, 6")
    A(f"s_add_u32 s20, s20, 4096")
    A(f"v_add_u32 v4, s20, v4")
    for i in range(4):
        A(f"global_load_dwordx4 {v(vG+4*i,4)}, v4, s[{sWm}:{sWm+1}]")
        if i < 3: A(f"v_add_u32 v4, {128*12288}, v4")
    A.label(f"{name}_nog1")
    A(f"v_bfe_u32 v4, v2, 2, 3")
    A(f"s_lshl_b32 s16, s{sWv}, 3")
    A(f"v_add_u32 v4, s16, v4")
    A(f"v_cvt_f32_u32 v5, v4")
    A(f"v_mul_f32 v5, {hex(f32_bits(1.0/2048))}, v5")
    A(f"v_lshrrev_b32 v6, 5, v2")
    A(f"v_cvt_f32_u32 v7, v6")
    A(f"v_mul_f32 v7, v7, v5")
    A(f"v_mul_f32 v7, 0x41000000, v7")
    for mt in range(2):
        for q in range(8):
            i = mt * 8 + q
            A(f"v_fmamk_f32 v{vTw+2*i}, v5, {hex(f32_bits(float(16*mt+q)))}, v7")
    for i in range(16):
        A(f"v_sin_f32 v{vTw+2*i+1}, v{vTw+2*i}")
        A(f"v_cos_f32 v{vTw+2*i}, v{vTw+2*i}")
    A(f"v_and_b32 v7, 3, v2")
    A(f"v_lshl_add_u32 v7, v6, 5, v7")
    A(f"v_mul_u32_u24 v7, 68, v7")
    A(f"v_add_u32 v7, v7, v4")
    A(f"v_lshlrev_b32 v7, 2, v7")
    A(f"v_and_b32 v5, 31, v2")
    A(f"s_lshr_b32 s16, s{sWv}, 1")
    A(f"s_lshl_b32 s17, s16, 5")
    A(f"v_add_u32 v5, s17, v5")
    A(f"v_mul_u32_u24 v5, {PITCH}, v5")
    A(f"v_lshl_add_u32 v5, v6, 4, v5")
    for p in range(4): A(f"v_mov_b32 v{vK+p}, {'0x00003f80' if p % 2 == 0 else '0x0000bf80'}")
    A(f"s_cmp_eq_u32 s22, 0")
    A(f"s_cbranch_scc1 {name}_w0")
    A("s_waitcnt vmcnt(8)")
    A(f"s_branch {name}_w1")
    A.label(f"{name}_w0")
    A("s_waitcnt vmcnt(0)")
    A.label(f"{name}_w1")
    for ctrl in ("quad_perm:[1,0,3,2]", "quad_perm:[2,3,0,1]", "row_half_mirror"):
        A(f"v_add_f32_dpp v{vM}, v{vM}, v{vM} {ctrl} row_mask:0xf bank_mask:0xf")
        A.nop(2)
    for mt in range(2):
        A(f"v_mfma_f32_32x32x16_bf16 {v(vD1+16*mt,16)}, {v(vW1+8*mt,4)}, {v(vX,4)}, 0")
    for mt in range(2):
        A(f"v_mfma_f32_32x32x16_bf16 {v(vD1+16*mt,16)}, {v(vW1+8*mt+4,4)}, {v(vX+4,4)}, {v(vD1+16*mt,16)}")
    round_bf16(A, vM, vM)
    A(f"v_add_f32 v{vM+1}, 1.0, v{vM}")
    round_bf16(A, vM + 1, vM + 1)
    A(f"v_mul_f32 v{vM}, 0x45000000, v{vM}")
    A.nop(1)
    for i in range(4):
        A(f"v_readlane_b32 s{24+i}, v{vM}, {8*i}")
        A(f"v_readlane_b32 s{28+i}, v{vM+1}, {32+8*i}")
    A.nop(4)
    for mt in range(2):
        for q in range(8):
            i = mt * 8 + q
            d = vD1 + 16 * mt + 2 * q
            t = vX + 2 * (q & 3)
            A(f"v_pk_mul_f32 {v(t,2)}, {v(d,2)}, {v(vTw+2*i,2)} op_sel:[0,0] op_sel_hi:[1,0]")
            A(f"v_pk_fma_f32 {v(t,2)}, {v(d,2)}, {v(vTw+2*i,2)}, {v(t,2)} op_sel:[1,1,0] op_sel_hi:[0,1,1] neg_hi:[1,0,0]")
            A(f"v_cvt_pk_bf16_f32 v{t}, v{t}, v{t+1}")
            A(f"ds_write_b32 v7, v{t} offset:{LDS_B + (16*mt+q)*4*PITCH}")
    A("s_waitcnt lgkmcnt(0)")
    A("s_barrier")
    for kt in range(8):
        A(f"ds_read_b128 {v(vDA+4*kt,4)}, v5 offset:{LDS_B + kt*32}")
    for kt in range(8):
        A(f"s_waitcnt lgkmcnt({7-kt})")
        cin = "0" if kt == 0 else v(vD3, 16)
        A(f"v_mfma_f32_32x32x16_bf16 {v(vD3,16)}, {v(vDA+4*kt,4)}, {v(vW3+4*kt,4)}, {cin}")
    A(f"s_cmp_eq_u32 s{sWv}, 0")
    A(f"s_cbranch_scc0 {name}_no1024")
    for kt in range(8):
        cin = "0" if kt == 0 else v(vD4, 16)
        A(f"v_mfma_f32_32x32x16_bf16 {v(vD4,16)}, {v(vDA+4*kt,4)}, {v(vK,4)}, {cin}")
    A.label(f"{name}_no1024")
    A(f"v_and_b32 v4, 15, v2")
    A(f"v_lshlrev_b32 v4, 17, v4")
    A(f"v_lshl_add_u32 v4, v6, 12, v4")
    A(f"v_bfe_u32 v3, v2, 4, 1")
    A(f"v_lshl_add_u32 v4, v3, 3, v4")
    A(f"s_lshr_b32 s16, s{sWv}, 1")
    A(f"s_lshl_b32 s16, s16, 15")
    A(f"s_lshl_b32 s17, s15, 21")
    A(f"s_add_u32 s16, s16, s17")
    A(f"s_lshr_b32 s17, s13, 1")
    A(f"s_lshl_b32 s17, s17, 10")
    A(f"s_and_b32 s20, s13, 1")
    A(f"s_lshl_b32 s20, s20, 5")
    A(f"s_add_u32 s20, s20, s14")
    A(f"s_lshl_b32 s20, s20, 4")
    A(f"s_add_u32 s17, s17, s20")
    A(f"s_add_u32 s16, s16, s17")
    A(f"s_add_u32 s16, s16, {WS_ZF}")
    A(f"v_add_u32 v4, s16, v4")
    A(f"s_cmp_eq_u32 s{sWv}, 0")
    A(f"s_cselect_b32 s20, 1, 0")
    A(f"s_mov_b32 s21, 0")
    A(f"s_mov_b64 vcc, s[20:21]")
    A.nop(10)
    for i in range(4):
        A(f"v_mov_b32 v{vX+i}, s{24+i}")
        A(f"v_cndmask_b32 v{vX+i}, 0, v{vX+i}, vcc")
    for r in range(16):
        if r < 4: A(f"v_fma_f32 v{vD3+r}, v{vD3+r}, s{28+(r&3)}, v{vX+r}")
        else: A(f"v_mul_f32 v{vD3+r}, s{28+(r&3)}, v{vD3+r}")
    for R in range(4):
        A(f"v_cvt_pk_bf16_f32 v{vD3+4*R}, v{vD3+4*R}, v{vD3+4*R+1}")
        A(f"v_cvt_pk_bf16_f32 v{vD3+4*R+1}, v{vD3+4*R+2}, v{vD3+4*R+3}")
        A(f"global_store_dwordx2 v4, {v(vD3+4*R,2)}, s[{sWs}:{sWs+1}]")
        if R < 3: A(f"v_add_u32 v4, 8192, v4")
    A(f"s_cmp_eq_u32 s{sWv}, 0")
    A(f"s_cbranch_scc0 {name}_no1024b")
    for i in range(4): A(f"v_mul_f32 v{vD4+i}, s{28+i}, v{vD4+i}")
    A(f"v_cvt_pk_bf16_f32 v{vD4}, v{vD4}, v{vD4+1}")
    A(f"v_cvt_pk_bf16_f32 v{vD4+1}, v{vD4+2}, v{vD4+3}")
    A(f"v_cmp_gt_u32 vcc, 16, v2")
    A.nop(2)
    A(f"v_cndmask_b32 v{vD4}, 0, v{vD4}, vcc")
    A(f"v_cndmask_b32 v{vD4+1}, 0, v{vD4+1}, vcc")
    A(f"v_lshlrev_b32 v4, 3, v3")
    A(f"s_add_u32 s16, s17, {WS_ZF + 1024*4096}")
    A(f"v_add_u32 v4, s16, v4")
    A(f"s_mov_b64 exec, 0x10001")
    A(f"global_store_dwordx2 v4, {v(vD4,2)}, s[{sWs}:{sWs+1}]")
    A(f"s_mov_b64 exec, -1")
    A.label(f"{name}_no1024b")
    A(f"s_cmp_eq_u32 s22, 0")
    A(f"s_cbranch_scc1 {name}_end")
    A("s_waitcnt vmcnt(0)")
    vt = 4
    for i in range(4): silu_bf16(A, vC + i, vt)
    for i in range(4):
        for d in range(4):
            w = vG + 4 * i + d
            A(f"v_lshlrev_b32 v{vt}, 16, v{w}")
            A(f"v_and_b32 v{w}, 0xffff0000, v{w}")
            op = "v_mul_f32" if i == 0 else "v_fmac_f32"
            A(f"{op} v{vAcc+2*d}, v{vC+i}, v{vt}")
            A(f"{op} v{vAcc+2*d+1}, v{vC+i}, v{w}")
    A(f"v_lshlrev_b32 v4, 5, v0")
    A(f"v_add_u32 v4, {LDS_G}, v4")
    A(f"ds_write_b128 v4, {v(vAcc,4)}")
    A(f"ds_write_b128 v4, {v(vAcc+4,4)} offset:16")
    A(f"s_lshl_b32 s16, s{sWv}, 11")
    A(f"s_add_u32 s16, s16, {LDS_G}")
    A(f"v_and_b32 v5, 31, v2")
    A(f"v_lshlrev_b32 v5, 2, v5")
    A(f"v_lshl_add_u32 v5, v6, 10, v5")
    A(f"v_add_u32 v5, s16, v5")
    A("s_waitcnt lgkmcnt(0)")
    for g in range(8): A(f"ds_read_b32 v{vAcc+g}, v5 offset:{g*128}")
    A("s_waitcnt lgkmcnt(0)")
    for (x, y) in ((0, 1), (2, 3), (4, 5), (6, 7), (0, 2), (4, 6), (0, 4)):
        A(f"v_add_f32 v{vAcc+x}, v{vAcc+x}, v{vAcc+y}")
    A(f"v_lshlrev_b32 v5, 2, v0")
    A(f"v_add_u32 v5, {LDS_G+16384}, v5")
    A(f"ds_write_b32 v5, v{vAcc}")
    A("s_waitcnt lgkmcnt(0)")
    A("s_barrier")
    A(f"s_cmp_eq_u32 s{sWv}, 0")
    A(f"s_cbranch_scc0 {name}_end")
    A(f"v_and_b32 v5, 31, v2")
    A(f"v_lshlrev_b32 v5, 2, v5")
    A(f"v_lshl_add_u32 v5, v6, 10, v5")
    A(f"v_add_u32 v5, {LDS_G+16384}, v5")
    for g in range(8): A(f"ds_read_b32 v{vAcc+g}, v5 offset:{g*128}")
    A("s_waitcnt lgkmcnt(0)")
    for (x, y) in ((0, 1), (2, 3), (4, 5), (6, 7), (0, 2), (4, 6), (0, 4)):
        A(f"v_add_f32 v{vAcc+x}, v{vAcc+x}, v{vAcc+y}")
    A(f"v_mov_b32 v{vAcc+1}, v{vAcc}")
    A.nop(2)
    A(f"v_permlane32_swap_b32 v{vAcc}, v{vAcc+1}")
    A.nop(1)
    A(f"v_add_f32 v{vAcc}, v{vAcc}, v{vAcc+1}")
    A(f"s_mul_i32 s16, s19, {3072*4}")
    A(f"s_lshl_b32 s17, s18, 7")
    A(f"s_add_u32 s16, s16, s17")
    A(f"s_add_u32 s16, s16, {WS_MODP2}")
    A(f"v_and_b32 v5, 31, v2")
    A(f"v_lshlrev_b32 v5, 2, v5")
    A(f"v_add_u32 v5, s16, v5")
    A(f"s_mov_b32 exec_hi, 0")
    A(f"global_store_dword v5, v{vAcc}, s[{sWs}:{sWs+1}]")
    A.label(f"{name}_end")
    A("s_endpgm")
    for e in check_hazards(A.lines, name): print("HAZARD", e)
    lds = LDS_G + 16384 + 2048
    return (kernel_header(name) + A.text(), kernel_desc(name, 168, 96, 168),
            f"; @launch kernel={name} grid=(256,1,1) block=(512,1,1) lds={lds}")
```

```python
from asmlib import *
from common import *
from k_small import *
from k_l1 import gemv_issue, gemv_compute, gemv_finish

def gen_l3(name="l3_kernel"):
    A = Asm()
    vZ = 8
    vW4 = 24
    vW5 = 56
    vD = 72
    vTw = 104
    vXa = 136
    vXb = 144
    vP = 152
    vG = 176
    vC = 192; vAcc = 196
    vT = 204
    vMv = 220
    sWs, sC, sWm, sX = 6, 8, 10, 4
    sTab = 24
    sWv = 12
    LDS_MOD = 0
    LDS_T = 12288
    LDS_G = 12288 + 18432
    lds = LDS_G + 9216 + 256
    A(f"s_cmp_ge_u32 s2, 257")
    A(f"s_cbranch_scc1 {name}_end")
    A(f"s_load_dwordx4 s[{sC}:{sC+3}], s[0:1], {KARG['c']}")
    A(f"s_load_dwordx2 s[{sWs}:{sWs+1}], s[0:1], {KARG['ws']}")
    A(f"s_load_dwordx2 s[{sX}:{sX+1}], s[0:1], {KARG['x']}")
    A(f"s_getpc_b64 s[{sTab}:{sTab+1}]")
    A.label(f"{name}_pc")
    A(f"s_add_u32 s{sTab}, s{sTab}, tab_W4-{name}_pc")
    A(f"s_addc_u32 s{sTab+1}, s{sTab+1}, 0")
    A(f"v_lshrrev_b32 v1, 6, v0")
    A(f"v_and_b32 v2, 63, v0")
    A(f"v_readfirstlane_b32 s{sWv}, v1")
    A(f"v_lshlrev_b32 v3, 4, v2")
    for f in range(8):
        A(f"global_load_dwordx4 {v(vW4+4*f,4)}, v3, s[{sTab}:{sTab+1}] offset:{(f&3)*1024}")
        if f == 3: A(f"v_add_u32 v3, 4096, v3")
    A(f"v_add_u32 v3, 4096, v3")
    for f in range(4):
        A(f"global_load_dwordx4 {v(vW5+4*f,4)}, v3, s[{sTab}:{sTab+1}] offset:{f*1024}")
    A(f"s_and_b32 s13, s2, 7")
    A(f"s_lshl_b32 s13, s13, 5")
    A(f"s_lshr_b32 s14, s2, 3")
    A(f"s_add_u32 s13, s13, s14")
    A(f"s_cmp_eq_u32 s2, 256")
    A(f"s_cselect_b32 s13, 256, s13")
    A(f"s_lshl_b32 s13, s13, 2")
    A(f"s_add_u32 s13, s13, s{sWv}")
    A(f"s_cmp_le_u32 s13, 1024")
    A(f"s_cselect_b32 s14, 1, 0")
    A(f"s_min_u32 s13, s13, 1024")
    A(f"s_sub_u32 s15, 2048, s13")
    A(f"s_and_b32 s16, s13, 1023")
    A(f"s_cmp_lg_u32 s16, 0")
    A(f"s_cselect_b32 s16, s14, 0")
    A(f"s_and_b32 s15, s15, 2047")
    A("s_waitcnt lgkmcnt(0)")
    A(f"s_lshl_b32 s17, s13, 12")
    A(f"s_add_u32 s17, s17, {WS_ZF}")
    A(f"v_lshlrev_b32 v3, 4, v2")
    A(f"v_add_u32 v4, s17, v3")
    for kt in range(4):
        A(f"global_load_dwordx4 {v(vZ+4*kt,4)}, v4, s[{sWs}:{sWs+1}] offset:{kt*1024}")
    A(f"v_lshrrev_b32 v6, 5, v2")
    A(f"v_and_b32 v7, 31, v2")
    A(f"v_lshlrev_b32 v5, 6, v7")
    A(f"v_lshl_add_u32 v5, v6, 5, v5")
    A(f"v_sub_u32 v1, 2016, v5")
    A(f"s_lshl_b32 s17, s13, 11")
    A(f"v_add_u32 v4, s17, v5")
    A(f"global_load_dwordx4 {v(vXa,4)}, v4, s[{sX}:{sX+1}]")
    A(f"global_load_dwordx4 {v(vXa+4,4)}, v4, s[{sX}:{sX+1}] offset:16")
    A(f"s_lshl_b32 s17, s15, 11")
    A(f"v_add_u32 v4, s17, v1")
    A(f"global_load_dwordx4 {v(vXb,4)}, v4, s[{sX}:{sX+1}]")
    A(f"global_load_dwordx4 {v(vXb+4,4)}, v4, s[{sX}:{sX+1}] offset:16")
    A(f"v_lshlrev_b32 v4, 4, v0")
    A(f"v_add_u32 v4, {WS_MODP2}, v4")
    for p in range(2):
        for vv in range(3):
            off = vv * 4096 + p * 12288
            A(f"v_add_u32 v{vT}, {off}, v4")
            A(f"global_load_dwordx4 {v(vP+12*p+4*vv,4)}, v{vT}, s[{sWs}:{sWs+1}]")
    A(f"s_cmp_lt_u32 s2, 128")
    A(f"s_cselect_b32 s22, 1, 0")
    A(f"s_cbranch_scc0 {name}_nog1")
    A(f"s_and_b32 s18, s2, 15")
    A(f"s_lshr_b32 s19, s2, 4")
    gemv_issue(A, vG, vC, 0, sWm, sC, 18, 19, 5120, vT, vT + 1)
    A.label(f"{name}_nog1")
    A(f"v_cvt_f32_u32 v{vT}, v7")
    A(f"v_mul_f32 v{vT}, {hex(f32_bits(1.0/1024))}, v{vT}")
    A(f"v_cvt_f32_u32 v{vT+1}, v6")
    A(f"v_mul_f32 v{vT+1}, v{vT+1}, v{vT}")
    A(f"v_mul_f32 v{vT+1}, 0x41000000, v{vT+1}")
    for i in range(16):
        mt, q = i >> 3, i & 7
        A(f"v_fmamk_f32 v{vTw+2*i}, v{vT}, {hex(f32_bits(float(16*mt+q)))}, v{vT+1}")
    for i in range(16):
        A(f"v_sin_f32 v{vTw+2*i+1}, v{vTw+2*i}")
        A(f"v_cos_f32 v{vTw+2*i}, v{vTw+2*i}")
    A(f"s_mul_i32 s17, s{sWv}, 4608")
    A(f"s_add_u32 s17, s17, {LDS_T}")
    A(f"v_mul_u32_u24 v{vT}, {8*144}, v6")
    A(f"v_lshl_add_u32 v{vT}, v7, 2, v{vT}")
    A(f"v_add_u32 v3, s17, v{vT}")
    A(f"v_bfe_u32 v{vT}, v7, 2, 1")
    A(f"v_lshlrev_b32 v{vT}, 4, v{vT}")
    A(f"v_lshrrev_b32 v{vT+1}, 3, v7")
    A(f"v_lshl_add_u32 v{vT}, v{vT+1}, 2, v{vT}")
    A(f"v_and_b32 v{vT+1}, 3, v7")
    A(f"v_add_u32 v{vT}, v{vT}, v{vT+1}")
    A(f"v_mul_u32_u24 v{vT}, 144, v{vT}")
    A(f"v_lshl_add_u32 v{vT}, v6, 4, v{vT}")
    A(f"v_add_u32 v4, s17, v{vT}")
    A(f"s_cmp_eq_u32 s22, 0")
    A(f"s_cbranch_scc1 {name}_w0")
    A("s_waitcnt vmcnt(18)")
    A(f"s_branch {name}_w1")
    A.label(f"{name}_w0")
    A("s_waitcnt vmcnt(10)")
    A.label(f"{name}_w1")
    for kt in range(4):
        for mt in range(2):
            cin = "0" if kt == 0 else v(vD + 16 * mt, 16)
            A(f"v_mfma_f32_32x32x16_bf16 {v(vD+16*mt,16)}, {v(vW4+16*mt+4*kt,4)}, {v(vZ+4*kt,4)}, {cin}")
    A(f"s_cmp_eq_u32 s22, 0")
    A(f"s_cbranch_scc1 {name}_w2")
    A("s_waitcnt vmcnt(8)")
    A(f"s_branch {name}_w3")
    A.label(f"{name}_w2")
    A("s_waitcnt vmcnt(0)")
    A.label(f"{name}_w3")
    for i in range(12): A(f"v_add_f32 v{vP+i}, v{vP+i}, v{vP+12+i}")
    for i in range(12): round_bf16(A, vP + i, vP + i)
    for i in range(4):
        A(f"v_add_f32 v{vP+8+i}, 1.0, v{vP+8+i}")
        round_bf16(A, vP + 8 + i, vP + 8 + i)
    A(f"v_lshlrev_b32 v{vT}, 4, v0")
    for vv in range(3):
        A(f"ds_write_b128 v{vT}, {v(vP+4*vv,4)} offset:{LDS_MOD + vv*4096}")
    for mt in range(2):
        for q in range(8):
            i = mt * 8 + q
            d = vD + 16 * mt + 2 * q
            t = vZ + 2 * (q & 3)
            A(f"v_pk_mul_f32 {v(t,2)}, {v(d,2)}, {v(vTw+2*i,2)} op_sel:[0,0] op_sel_hi:[1,0]")
            A(f"v_pk_fma_f32 {v(t,2)}, {v(d,2)}, {v(vTw+2*i,2)}, {v(t,2)} op_sel:[1,1,0] op_sel_hi:[0,1,1] neg_hi:[1,0,0]")
            A(f"v_cvt_pk_bf16_f32 v{t}, v{t}, v{t+1}")
            A(f"ds_write_b32 v3, v{t} offset:{(16*mt+q)*144}")
    A("s_waitcnt lgkmcnt(0)")
    A("s_barrier")
    for kt in range(4):
        A(f"ds_read_b128 {v(vTw+4*kt,4)}, v4 offset:{kt*32}")
    for kt in range(4):
        A(f"s_waitcnt lgkmcnt({3-kt})")
        cin = "0" if kt == 0 else v(vD, 16)
        A(f"v_mfma_f32_32x32x16_bf16 {v(vD,16)}, {v(vTw+4*kt,4)}, {v(vW5+4*kt,4)}, {cin}")
    A(f"v_lshl_add_u32 v{vT}, v7, 1, v6")
    A(f"v_add_u32 v{vT}, 1, v{vT}")
    A(f"v_and_b32 v{vT}, 63, v{vT}")
    A(f"v_and_b32 v{vT+1}, 1, v{vT}")
    A(f"v_lshlrev_b32 v{vT+1}, 5, v{vT+1}")
    A(f"v_lshrrev_b32 v{vT}, 1, v{vT}")
    A(f"v_add_u32 v{vT}, v{vT}, v{vT+1}")
    A(f"v_lshlrev_b32 v{vT}, 2, v{vT}")
    A.nop(8)
    A(f"ds_bpermute_b32 v{vD+16}, v{vT}, v{vD}")
    A("s_waitcnt lgkmcnt(0)")
    def row_regs(which):
        return [vD + r for r in range(16)] if which == 0 else [vD + 16] + [vD + 16 - c for c in range(1, 16)]
    YB = vTw
    rb = row_regs(1)
    for c in range(16): A(f"v_mov_b32 v{YB+c}, v{rb[c]}")
    def load_mod(vec, vaddr):
        for qd in range(4):
            A(f"ds_read_b128 {v(vMv+4*qd,4)}, v{vaddr} offset:{LDS_MOD + vec*4096 + qd*16}")
        A("s_waitcnt lgkmcnt(0)")
    def rnd_pairs(regs, tmp):
        for i in range(8): A(f"v_cvt_pk_bf16_f32 v{tmp+i}, v{regs[2*i]}, v{regs[2*i+1]}")
        for i in range(8):
            A(f"v_lshlrev_b32 v{regs[2*i]}, 16, v{tmp+i}")
            A(f"v_and_b32 v{regs[2*i+1]}, 0xffff0000, v{tmp+i}")
    def process(Y, X, vByte, srow, lab):
        regs = [Y + i for i in range(16)]
        PK = vT
        AD = vT + 8
        A(f"v_lshlrev_b32 v{AD}, 1, v{vByte}")
        load_mod(0, AD)
        rnd_pairs(regs, PK)
        for i in range(16): A(f"v_mul_f32 v{regs[i]}, v{regs[i]}, v{vMv+i}")
        rnd_pairs(regs, PK)
        for i in range(8):
            A(f"v_lshlrev_b32 v{PK+i}, 16, v{X+i}")
            A(f"v_and_b32 v{X+i}, 0xffff0000, v{X+i}")
        for i in range(8):
            A(f"v_add_f32 v{regs[2*i]}, v{regs[2*i]}, v{PK+i}")
            A(f"v_add_f32 v{regs[2*i+1]}, v{regs[2*i+1]}, v{X+i}")
        for i in range(8): A(f"v_cvt_pk_bf16_f32 v{X+i}, v{regs[2*i]}, v{regs[2*i+1]}")
        for i in range(8):
            A(f"v_lshlrev_b32 v{regs[2*i]}, 16, v{X+i}")
            A(f"v_and_b32 v{regs[2*i+1]}, 0xffff0000, v{X+i}")
        A(f"s_lshl_b32 s17, s{srow}, 11")
        A(f"s_add_u32 s17, s17, {WS_X1}")
        A(f"v_add_u32 v{AD+1}, s17, v{vByte}")
        A(f"global_store_dwordx4 v{AD+1}, {v(X,4)}, s[{sWs}:{sWs+1}]")
        A(f"global_store_dwordx4 v{AD+1}, {v(X+4,4)}, s[{sWs}:{sWs+1}] offset:16")
        S = PK;
        A(f"v_add_f32 v{S}, v{regs[0]}, v{regs[1]}")
        for i in range(2, 16): A(f"v_add_f32 v{S}, v{S}, v{regs[i]}")
        A.nop(2)
        allreduce64(A, [S], [S + 1])
        A(f"v_mul_f32 v{S+2}, {hex(f32_bits(1.0/1024))}, v{S}")
        A(f"v_sub_f32 v{S+3}, v{regs[0]}, v{S+2}")
        A(f"v_mul_f32 v{S}, v{S+3}, v{S+3}")
        for i in range(1, 16):
            A(f"v_sub_f32 v{S+3}, v{regs[i]}, v{S+2}")
            A(f"v_fmac_f32 v{S}, v{S+3}, v{S+3}")
        A.nop(2)
        allreduce64(A, [S], [S + 1])
        A(f"v_mul_f32 v{S}, {hex(f32_bits(1.0/1024))}, v{S}")
        round_bf16(A, S, S)
        A(f"v_add_f32 v{S}, {hex(f32_bits(1e-5))}, v{S}")
        round_bf16(A, S, S)
        A(f"v_sqrt_f32 v{S}, v{S}")
        A("s_nop 0")
        round_bf16(A, S, S)
        A(f"v_rcp_f32 v{S+4}, v{S}")
        round_bf16(A, S + 2, S + 2)
        load_mod(2, AD)
        for i in range(16): A(f"v_sub_f32 v{regs[i]}, v{regs[i]}, v{S+2}")
        A(f"v_mov_b32 v{AD+2}, v{S+4}")
        rnd_pairs(regs, PK)
        for i in range(16): A(f"v_mul_f32 v{regs[i]}, v{regs[i]}, v{AD+2}")
        rnd_pairs(regs, PK)
        for i in range(16): A(f"v_mul_f32 v{regs[i]}, v{regs[i]}, v{vMv+i}")
        load_mod(1, AD)
        rnd_pairs(regs, PK)
        for i in range(16): A(f"v_add_f32 v{regs[i]}, v{regs[i]}, v{vMv+i}")
        for i in range(8): A(f"v_cvt_pk_bf16_f32 v{vMv+i}, v{regs[2*i]}, v{regs[2*i+1]}")
        A(f"s_lshr_b32 s17, s{srow}, 4")
        A(f"s_lshl_b32 s17, s17, 15")
        A(f"s_and_b32 s20, s{srow}, 15")
        A(f"s_lshl_b32 s20, s20, 4")
        A(f"s_add_u32 s17, s17, s20")
        A(f"s_add_u32 s17, s17, {WS_H2F}")
        A(f"v_lshlrev_b32 v{AD+1}, 4, v{vByte}")
        A(f"v_add_u32 v{AD+1}, s17, v{AD+1}")
        A(f"global_store_dwordx4 v{AD+1}, {v(vMv,4)}, s[{sWs}:{sWs+1}]")
        A(f"global_store_dwordx4 v{AD+1}, {v(vMv+4,4)}, s[{sWs}:{sWs+1}] offset:256")
        A.nop(2)
    A(f"s_cmp_eq_u32 s14, 0")
    A(f"s_cbranch_scc1 {name}_norow")
    process(vD, vXa, 5, 13, "a")
    A(f"s_cmp_eq_u32 s16, 0")
    A(f"s_cbranch_scc1 {name}_norow")
    process(YB, vXb, 1, 15, "b")
    A.label(f"{name}_norow")
    A(f"s_cmp_eq_u32 s22, 0")
    A(f"s_cbranch_scc1 {name}_end")
    A("s_waitcnt vmcnt(0)")
    gemv_compute(A, vG, vC, vAcc, vT, 0, LDS_G)
    A("s_waitcnt lgkmcnt(0)")
    A("s_barrier")
    gemv_finish(A, vAcc, vT, 0, sWv, LDS_G, sWs, WS_MODP3, 18, 19, f"{name}_g")
    A.label(f"{name}_end")
    A("s_endpgm")
    for e in check_hazards(A.lines, name): print("HAZARD", e)
    return (kernel_header(name) + A.text(), kernel_desc(name, 240, 96, 240),
            f"; @launch kernel={name} grid=(257,1,1) block=(256,1,1) lds={lds}")
```

```python
from asmlib import *
from common import *
import math

LOG2E = math.log2(math.e)

def allreduce64(A, regs, tmp):
    for ctrl in ("quad_perm:[1,0,3,2]", "quad_perm:[2,3,0,1]", "row_half_mirror", "row_mirror"):
        for r in regs:
            A(f"v_add_f32_dpp v{r}, v{r}, v{r} {ctrl} row_mask:0xf bank_mask:0xf")
        if len(regs) < 3: A.nop(3 - len(regs))
    for swap in ("v_permlane16_swap_b32", "v_permlane32_swap_b32"):
        for r, t in zip(regs, tmp): A(f"v_mov_b32 v{t}, v{r}")
        if len(regs) < 3: A.nop(3 - len(regs))
        for r, t in zip(regs, tmp): A(f"{swap} v{r}, v{t}")
        if len(regs) < 2: A.nop(1)
        for r, t in zip(regs, tmp): A(f"v_add_f32 v{r}, v{r}, v{t}")
        if len(regs) < 3: A.nop(3 - len(regs))

def round_bf16(A, dst, src):
    A(f"v_cvt_pk_bf16_f32 v{dst}, v{src}, v{src}")
    A(f"v_and_b32 v{dst}, 0xffff0000, v{dst}")

def silu_bf16(A, r, t):
    A(f"v_lshlrev_b32 v{r}, 16, v{r}")
    A(f"v_mul_f32 v{t}, {hex(f32_bits(-LOG2E))}, v{r}")
    A(f"v_exp_f32 v{t}, v{t}")
    A("s_nop 0")
    A(f"v_add_f32 v{t}, 1.0, v{t}")
    A(f"v_rcp_f32 v{t}, v{t}")
    A("s_nop 0")
    A(f"v_mul_f32 v{r}, v{r}, v{t}")
    round_bf16(A, r, r)
```

```python
class Op:
    def __init__(self, text=None, vm=None, wait_vm=None, extra=""):
        self.text = text; self.vm = vm; self.wait_vm = wait_vm; self.extra = extra

def resolve(prologue, body, niter, tail=None):
    issued = []; pos = {}
    def run(ops, it, res):
        for k, o in enumerate(ops):
            if o.vm is not None:
                t = o.vm(it)
                pos[t] = len(issued); issued.append(t)
            if o.wait_vm is not None:
                need = o.wait_vm(it)
                idx = -1
                for t in need:
                    if t in pos: idx = max(idx, pos[t])
                    else: assert False, f"wait on never-issued op {t} (it={it})"
                n = len(issued) - 1 - idx if idx >= 0 else 63
                n = min(n, 63)
                res[k] = min(res.get(k, 63), n)
    rp = {}; rb = {}; rt = {}
    run(prologue, None, rp)
    for it in range(niter): run(body, it, rb)
    if tail: run(tail, niter, rt)
    def emit(ops, res):
        out = []
        for k, o in enumerate(ops):
            if o.wait_vm is not None:
                out.append(f"s_waitcnt vmcnt({res[k]}){o.extra}")
            else:
                out.append(o.text)
        return out
    return emit(prologue, rp), emit(body, rb), (emit(tail, rt) if tail else [])
```

```python
import numpy as np, math
from asmlib import bf16_bits
def m_of(r, h): return 8 * (r >> 2) + 4 * h + (r & 3)
def frag(fn):
    out = []
    for l in range(64):
        h = l >> 5; i = l & 31
        vals = [bf16_bits(fn(i, 8 * h + j)) for j in range(8)]
        for p in range(4): out.append(vals[2 * p] | (vals[2 * p + 1] << 16))
    return out
INV = {m_of(r, h): (r, h) for r in range(16) for h in range(2)}
def cs(num, den):
    a = 2 * math.pi * (num % den) / den
    return math.cos(a), math.sin(a)
def table_W1():
    T = []
    for mt in range(2):
        for kt in range(2):
            def fn(m, k):
                r, h = INV[m]; t1 = 16 * mt + 8 * h + (r >> 1); part = r & 1; s1 = 16 * kt + k
                c, s = cs(t1 * s1, 32)
                return c if part == 0 else -s
            T += frag(fn)
    return T
def table_W3():
    T = []
    for th in range(2):
        for kt in range(8):
            def fn(col, k):
                part = col >> 4; t2 = 16 * th + (col & 15); s2 = 8 * kt + (k >> 1); pin = k & 1
                c, s = cs(t2 * s2, 64)
                if part == 0: return c if pin == 0 else s
                return -s if pin == 0 else c
            T += frag(fn)
    return T
def table_W4():
    T = []
    for mt in range(2):
        for kt in range(4):
            def fn(m, k):
                r, h = INV[m]; e1 = 16 * mt + 8 * h + (r >> 1); part = r & 1
                hk = k >> 3; j = k & 7; d1 = 8 * kt + 4 * hk + (j & 3); pin = j >> 2
                c, s = cs(e1 * d1, 32)
                if part == 0: return c if pin == 0 else s
                return -s if pin == 0 else c
            T += frag(fn)
    return T
def table_W5():
    T = []
    for kt in range(4):
        def fn(col, k):
            d2 = 8 * kt + (k >> 1); part = k & 1
            c, s = cs(col * d2, 32)
            return c if part == 0 else s
        T += frag(fn)
    return T
def emit_table(label, dwords):
    out = [".p2align 8", f"{label}:"]
    for i in range(0, len(dwords), 8):
        out.append(".long " + ", ".join("0x%08x" % d for d in dwords[i:i + 8]))
    return "\n".join(out) + "\n"
```

```python
from build import build
from k_l1 import gen_l1
from k_l2 import gen_l2
from k_l3 import gen_l3
from k_gemm3b import gen_gemm3b
from k_gemm4 import gen_gemm4
from tables import *
import sys
def count(k): return k
def full(path, stamp=False):
    ks = [gen_l1(), gen_l2(), gen_l3(), gen_gemm3b(stamp=stamp), gen_gemm4(stamp=stamp)]
    tab = ".type tab_W1,@object\n" + emit_table("tab_W1", table_W1() + table_W3()) + ".type tab_W4,@object\n" + emit_table("tab_W4", table_W4() + table_W5())
    last = ks[-1]
    ks[-1] = (last[0] + tab, last[1], last[2])
    build(ks, path)
if __name__ == "__main__":
    full(sys.argv[1] if len(sys.argv) > 1 else "full.s")
```

```python
from asmlib import *
from common import *
from sched import Op, resolve
from stamp import Stamper
import math

def gen_gemm3b(name="gemm3_kernel", DT=2, nomfma=False, nodma=False, notok=False, noread=False, stamp=False, noepi=False, prefetch=True, store_flags=''):
    NW = 4; NT = 4; NL = 14
    NDMA = 8
    U = 4; R = 4; NST = 16; SPS = 2
    SLOT = 32768
    A = Asm()
    ACC0 = 32
    def acc(L, j): return ACC0 + (L * NT + j) * 4
    nacc = NL * NT * 4
    accum_offset = 256
    ar = Regs("a", 0, 256)
    WF = [[ar.alloc(4, 4) for t in range(NL)] for b in range(2)]
    TF = [[[ar.alloc(4, 4) for j in range(NT)] for ks in range(SPS)] for d in range(DT)]
    nvgpr = accum_offset + ar.next
    vRd = [[2 + h * 7 + t for t in range(7)] for h in range(2)]
    vDma = 16; vTok = 17; vSt = 19; vLane = 20
    sWsrd = 16; sTsrd = 20; sAsrd = 24
    sW = 28; sT = 29; sM0 = 30; sTmp = 31; sCnt = 32; sWv = 33; sOdd = 38; sSing = 39
    sTj = [56, 57, 58, 59]

    ST = Stamper(A, 3, stamp, sbase=78, sws=8, swv=33, vtmp=2)
    ST.mark()
    A(f"s_cmp_ge_u32 s2, 256")
    A(f"s_cbranch_scc1 {name}_end")
    A(f"s_load_dwordx4 s[4:7], s[0:1], {KARG['wg']}")
    A(f"s_load_dwordx2 s[8:9], s[0:1], {KARG['ws']}")
    A(f"s_load_dwordx2 s[72:73], s[0:1], {KARG['wd']}")
    A(f"v_lshrrev_b32 v1, 6, v0")
    A(f"v_and_b32 v{vLane}, 63, v0")
    A(f"v_readfirstlane_b32 s{sWv}, v1")
    A(f"s_and_b32 s11, s2, 7")
    A(f"s_lshr_b32 s12, s2, 3")
    A(f"s_and_b32 s13, s12, 3")
    A(f"s_lshl_b32 s11, s11, 2")
    A(f"s_add_u32 s13, s13, s11")
    A(f"s_lshr_b32 s14, s2, 5")
    A(f"s_and_b32 s{sOdd}, s13, 1")
    A(f"s_lshr_b32 s15, s{sWv}, 1")
    vDma2 = 18
    A(f"v_lshrrev_b32 v2, 4, v{vLane}")
    A(f"v_bfe_u32 v3, v{vLane}, 1, 3")
    A(f"v_mul_u32_u24 v5, 7168, v2")
    A(f"v_and_b32 v6, 1, v{vLane}")
    A(f"v_lshlrev_b32 v6, 4, v6")
    A(f"v_add_u32 v5, v5, v6")
    A(f"v_mov_b32 v7, 0x40000000")
    for (dst, add) in ((vDma, 0), (vDma2, 4)):
        A(f"v_add_u32 v4, {add}, v2")
        A(f"v_xor_b32 v4, v3, v4")
        A(f"v_lshlrev_b32 v6, 5, v4")
        A(f"v_add_u32 v6, v5, v6")
        A(f"v_cmp_eq_u32 vcc, 7, v4")
        A.nop(2)
        A(f"v_cndmask_b32 v{dst}, v6, v7, vcc")
    A(f"v_lshlrev_b32 v{vTok}, 4, v{vLane}")
    A(f"v_mov_b32 v{vSt}, v{vTok}")
    A(f"v_lshrrev_b32 v22, 4, v{vLane}")
    A(f"v_bfe_u32 v24, v{vLane}, 2, 2")
    A(f"v_and_b32 v25, 3, v{vLane}")
    A(f"v_lshl_add_u32 v27, v22, 3, v24")
    A(f"v_lshlrev_b32 v26, 8, v27")
    A(f"v_lshl_add_u32 v26, v25, 3, v26")
    A(f"v_and_b32 v23, 1, v22")
    A(f"v_lshl_add_u32 v27, v23, 2, v24")
    for L in range(7):
        A(f"v_xor_b32 v28, {L}, v27")
        A(f"v_lshl_add_u32 v{vRd[0][L]}, v28, 5, v26")
        A(f"v_add_u32 v{vRd[1][L]}, 0x10000, v{vRd[0][L]}")
    A(f"s_waitcnt lgkmcnt(0)")
    A(f"s_cmp_eq_u32 s15, 0")
    A(f"s_cselect_b32 s{sWsrd}, s4, s6")
    A(f"s_cselect_b32 s{sWsrd+1}, s5, s7")
    A(f"s_and_b32 s35, s{sWv}, 1")
    A(f"s_mul_i32 s36, s35, {NDMA*4*7168}")
    A(f"s_mul_i32 s37, s13, 224")
    A(f"s_add_u32 s36, s36, s37")
    A(f"s_add_u32 s{sWsrd}, s{sWsrd}, s36")
    A(f"s_addc_u32 s{sWsrd+1}, s{sWsrd+1}, 0")
    A(f"s_sub_u32 s{sWsrd+2}, {1024*7168}, s36")
    A(f"s_mov_b32 s{sWsrd+3}, 0x20000")
    A(f"s_lshl_b32 s{sM0}, s15, 14")
    A(f"s_mul_i32 s35, s35, {NDMA*1024}")
    A(f"s_add_u32 s{sM0}, s{sM0}, s35")
    A(f"s_lshl_b32 s35, s14, 4")
    A(f"s_lshl_b32 s36, s{sWv}, 2")
    A(f"s_add_u32 s35, s35, s36")
    A(f"s_lshl_b32 s36, s35, 15")
    A(f"s_add_u32 s36, s36, {WS_H2F}")
    A(f"s_add_u32 s{sTsrd}, s8, s36")
    A(f"s_addc_u32 s{sTsrd+1}, s9, 0")
    A(f"s_mov_b32 s{sTsrd+2}, {NT*32768}")
    A(f"s_mov_b32 s{sTsrd+3}, 0x20000")
    A(f"s_lshr_b32 s36, s35, 1")
    A(f"s_mul_i32 s36, s36, 224")
    A(f"s_mul_i32 s37, s13, 7")
    A(f"s_add_u32 s36, s36, s37")
    A(f"s_lshl_b32 s36, s36, 10")
    A(f"s_add_u32 s36, s36, {WS_ACT}")
    A(f"s_add_u32 s{sAsrd}, s8, s36")
    A(f"s_addc_u32 s{sAsrd+1}, s9, 0")
    A(f"s_mov_b32 s{sAsrd+2}, {(224+7)*1024}")
    A(f"s_mov_b32 s{sAsrd+3}, 0x20000")
    if prefetch:
        A(f"s_mul_i32 s74, s2, 28672")
        A(f"s_add_u32 s72, s72, s74")
        A(f"s_addc_u32 s73, s73, 0")
        A(f"s_mov_b32 s74, 28672")
        A(f"s_mov_b32 s75, 0x20000")
        A(f"v_lshlrev_b32 v21, 7, v0")
    A(f"s_cmp_lt_u32 s2, 128")
    A(f"s_cbranch_scc0 {name}_nofl")
    A(f"s_lshl_b32 s76, s2, 7")
    A(f"s_add_u32 s76, s76, 0x20000")
    A(f"v_mov_b32 v30, s76")
    A(f"v_mov_b32 v31, 0")
    A(f"s_mov_b64 exec, 1")
    A(f"global_store_dword v30, v31, s[8:9]")
    A(f"s_mov_b64 exec, -1")
    A.label(f"{name}_nofl")
    def dma_ops(tag, slot, k):
        o = []
        o.append(Op(f"s_add_u32 m0, s{sM0}, {slot*SLOT + k*1024}"))
        o.append(Op(f"s_add_u32 s{sTmp}, s{sW}, {k*4*7168}"))
        vd = vDma if ((k >> 1) & 1) == 0 else vDma2
        if nodma: o.append(Op("s_nop 0"))
        else: o.append(Op(f"buffer_load_dwordx4 v{vd}, s[{sWsrd}:{sWsrd+3}], s{sTmp} offen lds", vm=tag))
        return o
    def tok_op(ring, ks, j, tag):
        if notok: return Op("s_nop 0")
        return Op(f"buffer_load_dwordx4 {a(TF[ring][ks][j],4)}, v{vTok}, s[{sTsrd}:{sTsrd+3}], s{sTj[j]} offen offset:{ks*1024}", vm=tag)
    def set_T(stage):
        return [Op(f"s_mov_b32 s{sTj[j]}, {j*32768 + stage*2048}") for j in range(NT)]
    def inc_T():
        return [Op(f"s_add_u32 s{sTj[j]}, s{sTj[j]}, 2048") for j in range(NT)]

    pro = []
    pro.append(Op(f"s_mov_b32 s{sW}, 0"))
    for st in range(3):
        for k in range(NDMA):
            pro += dma_ops((lambda it, st=st, k=k: ('W', st, k)), st, k)
        if st == 0:
            pro += set_T(0)
            for ks in range(SPS):
                for j in range(NT):
                    pro.append(tok_op(0, ks, j, (lambda it, ks=ks, j=j: ('T', 0, ks, j))))
        pro.append(Op(f"s_add_u32 s{sW}, s{sW}, {64*7168}"))
    for d in range(1, DT):
        pro += set_T(d)
        for ks in range(SPS):
            if d == DT - 1 and ks == SPS - 1: continue
            for j in range(NT):
                pro.append(tok_op(d, ks, j, (lambda it, d=d, ks=ks, j=j: ('T', d, ks, j))))
    if prefetch:
        pass
    for r in range(nacc):
        pro.append(Op(f"v_mov_b32 v{ACC0+r}, 0"))
    pro.append(Op(f"s_mov_b32 s{sCnt}, 0"))
    if not nodma:
        pro.append(Op(wait_vm=lambda it: [('W', 0, k) for k in range(NDMA)]))
    pro.append(Op("s_barrier"))
    def rd_ops(buf, slot, ks):
        o = []
        for L in range(7):
            for mx in range(2):
                for q in range(2):
                    if noread: continue
                    o.append(Op(f"ds_read_b64_tr_b16 {a(WF[buf][mx*7+L]+2*q,2)}, v{vRd[slot>>1][L]} offset:{(slot&1)*SLOT + mx*16384 + ks*8192 + q*1024}"))
        return o
    pro += rd_ops(0, 0, 0)

    body = []
    for st in range(U):
        for ks in range(SPS):
            cur = (st * SPS + ks) & 1
            nst, nks = (st, ks + 1) if ks < SPS - 1 else (st + 1, 0)
            pst, pks = (st, ks - 1) if ks > 0 else (st - 1, SPS - 1)
            tk = []
            for j in range(NT):
                tk.append(tok_op((pst % DT), pks, j, (lambda it, pst=pst, pks=pks, j=j: ('T', it * U + pst + DT, pks, j))))
            tkinc = inc_T() if ks == 0 else []
            dm = []
            per = NDMA // SPS
            for k in range(ks * per, (ks + 1) * per):
                dm.append(dma_ops((lambda it, st=st, k=k: ('W', it * U + st + 3, k)), (st + 3) % R, k))
            dmend = [Op(f"s_add_u32 s{sW}, s{sW}, {64*7168}")] if ks == SPS - 1 else []
            rd = rd_ops(cur ^ 1, nst % R, nks)
            head = [Op("s_waitcnt lgkmcnt(0)")]
            if not notok:
                head.append(Op(wait_vm=lambda it, st=st, ks=ks: [('T', it * U + st, ks, j) for j in range(NT)]))
            mf = []
            for L in range(7):
                for mx in range(2):
                    for j in range(NT):
                        if nomfma: mf.append(Op("s_nop 0"))
                        else:
                            LL = mx * 7 + L
                            mf.append(Op(f"v_mfma_f32_16x16x32_bf16 {v(acc(LL,j),4)}, {a(WF[cur][LL],4)}, {a(TF[st%DT][ks][j],4)}, {v(acc(LL,j),4)}"))
            nm = len(mf)
            gaps = [[] for _ in range(nm)]
            if ks == SPS - 1:
                b = []
                if not nodma:
                    b.append(Op(wait_vm=lambda it, st=st: [('W', it * U + st + 1, k) for k in range(NDMA)]))
                b.append(Op("s_barrier"))
                gaps[0] += b
            g = 1
            for o in rd:
                gaps[g].append(o); g += 1
                if g % 7 == 0: g += 1
            holes = [7, 14, 21, 28, 35, 36, 38, 40, 42, 44, 46, 48, 50, 52]
            hi = 0
            for o in tk:
                gaps[holes[hi]].append(o); hi += 1
            gaps[holes[hi]] += tkinc; hi += 1
            for d in dm:
                gaps[holes[hi]] += d; hi += 1
            gaps[holes[hi]] += dmend
            if prefetch and st == 1 and ks == 0:
                gaps[54] += [Op(f"s_cmp_eq_u32 s{sCnt}, s{sWv}"), Op(f"s_cselect_b32 s76, 0, 0x10000000"),
                             Op(f"buffer_load_dword v30, v21, s[72:75], s76 offen", vm=lambda it: ('P', it))]
            body += head
            for g in range(nm):
                body.append(mf[g]); body += gaps[g]
    body.append(Op(f"s_add_u32 s{sCnt}, s{sCnt}, 1"))
    if stamp:
        import os
        op = "s_memtime" if os.environ.get("STAMP_CYC") else "s_memrealtime"
        for i in range(1, 6):
            body.append(Op(f"s_cmp_eq_u32 s{sCnt}, {i}"))
            body.append(Op(f"s_cbranch_scc0 {name}_sk{i}"))
            body.append(Op(f"{op} s[{78+2*(2+i)}:{78+2*(2+i)+1}]"))
            body.append(Op(f"{name}_sk{i}:"))
    body.append(Op(f"s_cmp_lt_u32 s{sCnt}, {NST//U}"))
    pl, bl, _ = resolve(pro, body, NST // U)
    ST.mark()
    for l in pl: A(l)
    ST.mark()
    A(".p2align 6")
    A.label(f"{name}_loop")
    for l in bl: A(l)
    A(f"s_cbranch_scc1 {name}_loop")
    ST.mark(8)
    A.nop(10)
    c0 = -2.0 * math.sqrt(2.0 / math.pi) * math.log2(math.e)
    c1 = c0 * 0.044715
    vC0, vC1, vONE = 2, 4, 6
    for r, val in ((vC0, c0), (vC1, c1), (vONE, 1.0)):
        A(f"v_mov_b32 v{r}, {hex(f32_bits(val))}")
        A(f"v_mov_b32 v{r+1}, {hex(f32_bits(val))}")
    T = 22
    def geglu(tiles):
        n = len(tiles)
        prs = [(g + 2 * p, u + 2 * p) for (g, u) in tiles for p in range(2)]
        for i, (g, u) in enumerate(prs): A(f"v_pk_mul_f32 {v(T+2*i,2)}, {v(g,2)}, {v(g,2)}")
        for i, (g, u) in enumerate(prs): A(f"v_pk_fma_f32 {v(T+2*i,2)}, {v(T+2*i,2)}, {v(vC1,2)}, {v(vC0,2)}")
        for i, (g, u) in enumerate(prs): A(f"v_pk_mul_f32 {v(T+2*i,2)}, {v(T+2*i,2)}, {v(g,2)}")
        for i in range(2 * len(prs)): A(f"v_exp_f32 v{T+i}, v{T+i}")
        for i, (g, u) in enumerate(prs): A(f"v_pk_mul_f32 {v(u,2)}, {v(u,2)}, {v(g,2)}")
        for i, (g, u) in enumerate(prs): A(f"v_pk_add_f32 {v(T+2*i,2)}, {v(T+2*i,2)}, {v(vONE,2)}")
        for i in range(2 * len(prs)): A(f"v_rcp_f32 v{T+i}, v{T+i}")
        A("s_nop 0")
        for i, (g, u) in enumerate(prs): A(f"v_pk_mul_f32 {v(u,2)}, {v(u,2)}, {v(T+2*i,2)}")
        return prs
    if not noepi:
        cnt = 0
        for jp in range(2):
            for L in range(7):
                prs = geglu([(acc(L, 2*jp), acc(7 + L, 2*jp)), (acc(L, 2*jp+1), acc(7 + L, 2*jp+1))])
                o = 8 + 4 * (cnt & 1); cnt += 1
                for i, (g, u) in enumerate(prs): A(f"v_cvt_pk_bf16_f32 v{o+i}, v{u}, v{u+1}")
                A(f"s_mov_b32 s{sTmp}, {(jp*224 + L)*1024}")
                A("s_nop 0")
                A(f"v_permlane16_swap_b32 v{o}, v{o+2}")
                A(f"v_permlane16_swap_b32 v{o+1}, v{o+3}")
                A(f"buffer_store_dwordx4 {v(o,4)}, v{vSt}, s[{sAsrd}:{sAsrd+3}], s{sTmp} offen{store_flags}")
    ST.dump(f"{name}_end")
    if not stamp: A.label(f"{name}_end")
    A("s_endpgm")
    errs = check_hazards(A.lines + bl, name)
    for e in errs: print("HAZARD", e)
    lds = R * SLOT
    text = kernel_header(name) + A.text()
    desc = kernel_desc(name, nvgpr, 102, accum_offset)
    launch = f"; @launch kernel={name} grid=(256,1,1) block=({NW*64},1,1) lds={lds}"
    return text, desc, launch
```

```python
from asmlib import *
from common import *
from sched import Op, resolve
from stamp import Stamper
import math

def gen_gemm4(name="gemm4_kernel", TN=64, SPS=4, R=4, DT=2, nomfma=False, nodma=False, notok=False, noread=False, stamp=False, xmap=0):
    NW = 4; NT = 2; NN = TN // 16
    KTOT = 3584
    NST = KTOT // (32 * SPS)
    U = R
    assert NST % U == 0 and U % DT == 0
    ROWB = TN * 2
    SLOT = 32 * SPS * ROWB
    RPI = 1024 // ROWB
    NDMA = (32 * SPS // RPI) // NW
    A = Asm()
    ACC0 = 32
    def acc(T, j): return ACC0 + (T * NT + j) * 4
    nacc = NN * NT * 4
    vr = Regs("v", ACC0 + nacc, 256)
    WF = [[vr.alloc(4, 4) for t in range(NN)] for b in range(2)]
    TF = [[[vr.alloc(4, 4) for j in range(NT)] for ks in range(SPS)] for d in range(DT)]
    nvgpr = vr.next; accum_offset = (nvgpr + 3) // 4 * 4
    vRd = [2 + t for t in range(NN)]
    vDma = 16; vTok = 17; vOut = 18; vLane = 20
    sWsrd = 16; sTsrd = 20; sOsrd = 24; sXsrd = 40
    sW = 28; sM0 = 30; sTmp = 31; sCnt = 32; sWv = 33
    sTj = [56, 57]
    LDS_GB = R * SLOT
    assert R * SLOT <= 65536 * 2

    ST = Stamper(A, 4, stamp, sbase=78, sws=8, swv=33, vtmp=2)
    ST.mark()
    A(f"s_cmp_ge_u32 s2, 256")
    A(f"s_cbranch_scc1 {name}_end")
    A(f"s_load_dwordx2 s[4:5], s[0:1], {KARG['wd']}")
    A(f"s_load_dwordx2 s[6:7], s[0:1], {KARG['out']}")
    A(f"s_load_dwordx2 s[8:9], s[0:1], {KARG['ws']}")
    A(f"v_lshrrev_b32 v1, 6, v0")
    A(f"v_and_b32 v{vLane}, 63, v0")
    A(f"v_readfirstlane_b32 s{sWv}, v1")
    A(f"s_and_b32 s11, s2, 7")
    A(f"s_lshr_b32 s12, s2, 3")
    A(f"s_lshr_b32 s13, s11, 1")
    A(f"s_lshl_b32 s13, s13, 2")
    A(f"s_and_b32 s14, s12, 3")
    A(f"s_add_u32 s13, s13, s14")
    A(f"s_and_b32 s14, s11, 1")
    A(f"s_lshl_b32 s14, s14, 3")
    A(f"s_lshr_b32 s15, s12, 2")
    A(f"s_add_u32 s14, s14, s15")
    assert TN == 64
    if xmap == 1:
        A(f"s_lshl_b32 s13, s11, 1")
        A(f"s_and_b32 s14, s12, 1")
        A(f"s_add_u32 s13, s13, s14")
        A(f"s_lshr_b32 s14, s12, 1")
    GPR = ROWB // 16
    A(f"v_lshrrev_b32 v2, 3, v{vLane}")
    A(f"v_bfe_u32 v3, v{vLane}, 1, 2")
    A(f"v_bfe_u32 v4, v{vLane}, 4, 2")
    A(f"v_xor_b32 v3, v3, v4")
    A(f"v_lshlrev_b32 v5, 11, v2")
    A(f"v_lshl_add_u32 v5, v3, 5, v5")
    A(f"v_and_b32 v6, 1, v{vLane}")
    A(f"v_lshl_add_u32 v{vDma}, v6, 4, v5")
    A(f"v_lshlrev_b32 v{vTok}, 4, v{vLane}")
    A(f"v_lshrrev_b32 v22, 4, v{vLane}")
    A(f"v_bfe_u32 v24, v{vLane}, 2, 2")
    A(f"v_and_b32 v25, 3, v{vLane}")
    A(f"v_lshl_add_u32 v27, v22, 2, v24")
    A(f"v_lshlrev_b32 v26, 7, v27")
    A(f"v_lshl_add_u32 v26, v25, 3, v26")
    A(f"v_bfe_u32 v27, v27, 1, 2")
    for T in range(NN):
        A(f"v_xor_b32 v28, {T}, v27")
        A(f"v_lshl_add_u32 v{vRd[T]}, v28, 5, v26")
    A(f"v_and_b32 v23, 15, v{vLane}")
    A(f"v_lshlrev_b32 v{vOut}, 11, v23")
    A(f"v_and_b32 v28, 1, v22")
    A(f"v_lshl_add_u32 v{vOut}, v28, 5, v{vOut}")
    A(f"v_lshrrev_b32 v28, 1, v22")
    A(f"v_lshl_add_u32 v{vOut}, v28, 4, v{vOut}")
    A(f"s_waitcnt lgkmcnt(0)")
    A(f"s_mul_i32 s36, s{sWv}, {NDMA*RPI*2048}")
    A(f"s_lshl_b32 s37, s14, 7")
    A(f"s_add_u32 s36, s36, s37")
    A(f"s_add_u32 s{sWsrd}, s4, s36")
    A(f"s_addc_u32 s{sWsrd+1}, s5, 0")
    A(f"s_sub_u32 s{sWsrd+2}, {3584*2048}, s36")
    A(f"s_mov_b32 s{sWsrd+3}, 0x20000")
    A(f"s_mul_i32 s{sM0}, s{sWv}, {NDMA*1024}")
    A(f"s_lshl_b32 s35, s13, 3")
    A(f"s_lshl_b32 s36, s{sWv}, 1")
    A(f"s_add_u32 s35, s35, s36")
    A(f"s_mul_i32 s36, s35, {112*1024}")
    A(f"s_add_u32 s36, s36, {WS_ACT}")
    A(f"s_add_u32 s{sTsrd}, s8, s36")
    A(f"s_addc_u32 s{sTsrd+1}, s9, 0")
    A(f"s_mov_b32 s{sTsrd+2}, {NT*112*1024}")
    A(f"s_mov_b32 s{sTsrd+3}, 0x20000")
    A(f"s_lshl_b32 s36, s35, 15")
    A(f"s_lshl_b32 s37, s14, 7")
    A(f"s_add_u32 s36, s36, s37")
    A(f"s_add_u32 s{sOsrd}, s6, s36")
    A(f"s_addc_u32 s{sOsrd+1}, s7, 0")
    A(f"s_sub_u32 s{sOsrd+2}, {2048*2048}, s36")
    A(f"s_mov_b32 s{sOsrd+3}, 0x20000")
    A(f"s_add_u32 s37, s36, {WS_X1}")
    A(f"s_add_u32 s{sXsrd}, s8, s37")
    A(f"s_addc_u32 s{sXsrd+1}, s9, 0")
    A(f"s_sub_u32 s{sXsrd+2}, {2048*2048}, s36")
    A(f"s_mov_b32 s{sXsrd+3}, 0x20000")
    vG = TF[DT-1][SPS-1][0]
    A(f"s_lshl_b32 s37, s14, 8")
    A(f"s_add_u32 s37, s37, {WS_MODP2 + 3072*4}")
    A(f"s_add_u32 s44, s8, s37")
    A(f"s_addc_u32 s45, s9, 0")
    A(f"v_lshlrev_b32 v28, 2, v{vLane}")
    A(f"v_add_u32 v29, 16384, v28")
    gb_load = [Op(f"global_load_dword v{vG}, v28, s[44:45]", vm=lambda it: ('G', 0)),
               Op(f"global_load_dword v{vG+1}, v29, s[44:45]", vm=lambda it: ('G', 1))]
    gb_proc = [Op(wait_vm=lambda it: [('G', 0), ('G', 1)])]
    for t in [f"v_add_f32 v{vG}, v{vG}, v{vG+1}",
              f"v_cvt_pk_bf16_f32 v{vG}, v{vG}, v{vG}",
              f"v_and_b32 v{vG}, 0xffff0000, v{vG}",
              f"v_lshlrev_b32 v28, 2, v{vLane}",
              f"v_add_u32 v28, {LDS_GB}, v28",
              f"ds_write_b32 v28, v{vG}",
              f"s_waitcnt lgkmcnt(0)"]:
        gb_proc.append(Op(t))

    def dma_ops(tag, slot, k):
        o = []
        o.append(Op(f"s_add_u32 m0, s{sM0}, {slot*SLOT + k*1024}"))
        o.append(Op(f"s_add_u32 s{sTmp}, s{sW}, {k*RPI*2048}"))
        if nodma: o.append(Op("s_nop 0"))
        else: o.append(Op(f"buffer_load_dwordx4 v{vDma}, s[{sWsrd}:{sWsrd+3}], s{sTmp} offen lds", vm=tag))
        return o
    def tok_op(ring, ks, j, tag):
        if notok: return Op("s_nop 0")
        return Op(f"buffer_load_dwordx4 {v(TF[ring][ks][j],4)}, v{vTok}, s[{sTsrd}:{sTsrd+3}], s{sTj[j]} offen offset:{ks*1024}", vm=tag)
    assert SPS <= 4
    def set_T(stage): return [Op(f"s_mov_b32 s{sTj[j]}, {j*112*1024 + stage*SPS*1024}") for j in range(NT)]
    def inc_T(): return [Op(f"s_add_u32 s{sTj[j]}, s{sTj[j]}, {SPS*1024}") for j in range(NT)]
    STB = 32 * SPS * 2048
    pro = []
    pro += gb_load
    pro.append(Op(f"s_mov_b32 s{sW}, 0"))
    for st in range(R - 1):
        for k in range(NDMA):
            pro += dma_ops((lambda it, st=st, k=k: ('W', st, k)), st, k)
        if st < DT:
            pro += set_T(st)
            for ks in range(SPS):
                if st == DT - 1 and ks == SPS - 1: continue
                for j in range(NT):
                    pro.append(tok_op(st, ks, j, (lambda it, st=st, ks=ks, j=j: ('T', st, ks, j))))
        pro.append(Op(f"s_add_u32 s{sW}, s{sW}, {STB}"))
    assert DT <= R - 1
    for r in range(nacc): pro.append(Op(f"v_mov_b32 v{ACC0+r}, 0"))
    pro += gb_proc
    pro.append(Op(f"s_mov_b32 s{sCnt}, 0"))
    if not nodma: pro.append(Op(wait_vm=lambda it: [('W', 0, k) for k in range(NDMA)]))
    pro.append(Op("s_barrier"))
    assert R * SLOT <= 65536
    def rd_ops(buf, slot, ks):
        o = []
        for T in range(NN):
            for q in range(2):
                if noread: continue
                o.append(Op(f"ds_read_b64_tr_b16 {v(WF[buf][T]+2*q,2)}, v{vRd[T]} offset:{slot*SLOT + ks*32*ROWB + q*16*ROWB}"))
        return o
    pro += rd_ops(0, 0, 0)
    body = []
    for st in range(U):
        for ks in range(SPS):
            cur = (st * SPS + ks) & 1
            nst, nks = (st, ks + 1) if ks < SPS - 1 else (st + 1, 0)
            pst, pks = (st, ks - 1) if ks > 0 else (st - 1, SPS - 1)
            tk = [tok_op((pst % DT), pks, j, (lambda it, pst=pst, pks=pks, j=j: ('T', it * U + pst + DT, pks, j))) for j in range(NT)]
            tkinc = inc_T() if ks == 0 else []
            dm = []
            ks_list = [k for k in range(NDMA) if k * SPS // NDMA == ks] if NDMA >= SPS else ([ks * NDMA // SPS] if (ks * NDMA) % SPS == 0 else [])
            for k in ks_list:
                dm.append(dma_ops((lambda it, st=st, k=k: ('W', it * U + st + R - 1, k)), (st + R - 1) % R, k))
            dmend = [Op(f"s_add_u32 s{sW}, s{sW}, {STB}")] if ks == SPS - 1 else []
            rd = rd_ops(cur ^ 1, nst % R, nks)
            head = [Op("s_waitcnt lgkmcnt(0)")]
            if not notok:
                head.append(Op(wait_vm=lambda it, st=st, ks=ks: [('T', it * U + st, ks, j) for j in range(NT)]))
            mf = []
            for T in range(NN):
                for j in range(NT):
                    if nomfma: mf.append(Op("s_nop 0"))
                    else: mf.append(Op(f"v_mfma_f32_16x16x32_bf16 {v(acc(T,j),4)}, {v(WF[cur][T],4)}, {v(TF[st%DT][ks][j],4)}, {v(acc(T,j),4)}"))
            nm = len(mf)
            gaps = [[] for _ in range(nm)]
            if ks == SPS - 1:
                b = []
                if not nodma: b.append(Op(wait_vm=lambda it, st=st: [('W', it * U + st + 1, k) for k in range(NDMA)]))
                b.append(Op("s_barrier"))
                gaps[0] += b
            for i, o in enumerate(rd): gaps[min(i // 2, nm - 1)].append(o)
            g0 = nm // 2
            gaps[g0] += [tk[0]]; gaps[min(g0 + 1, nm - 1)] += [tk[1]] + tkinc
            for i, d in enumerate(dm): gaps[min(g0 + 2 + i, nm - 1)] += d
            gaps[nm - 1] += dmend
            body += head
            for g in range(nm):
                body.append(mf[g]); body += gaps[g]
    body.append(Op(f"s_add_u32 s{sCnt}, s{sCnt}, 1"))
    if stamp:
        import os
        op = "s_memtime" if os.environ.get("STAMP_CYC") else "s_memrealtime"
        for i in range(1, 6):
            body.append(Op(f"s_cmp_eq_u32 s{sCnt}, {i}"))
            body.append(Op(f"s_cbranch_scc0 {name}_sk{i}"))
            body.append(Op(f"{op} s[{78+2*(2+i)}:{78+2*(2+i)+1}]"))
            body.append(Op(f"{name}_sk{i}:"))
    body.append(Op(f"s_cmp_lt_u32 s{sCnt}, {NST//U}"))
    pl, bl, _ = resolve(pro, body, NST // U)
    ST.mark()
    for l in pl: A(l)
    ST.mark()
    A(".p2align 6")
    A.label(f"{name}_loop")
    for l in bl: A(l)
    A(f"s_cbranch_scc1 {name}_loop")
    ST.mark(8)
    X = TF[0][0][0]
    A("s_waitcnt vmcnt(0)")
    NP = NN // 2
    xr = {}
    k = 0
    for j in range(NT):
        for P in range(NP):
            xr[(j, P)] = X + 4 * k; k += 1
            A(f"s_mov_b32 s{sTmp}, {j*16*2048 + P*64}")
            A(f"buffer_load_dwordx4 {v(xr[(j,P)],4)}, v{vOut}, s[{sXsrd}:{sXsrd+3}], s{sTmp} offen")
    G = X + 4 * k
    A(f"v_lshrrev_b32 v22, 4, v{vLane}")
    A(f"v_and_b32 v23, 1, v22")
    A(f"v_lshlrev_b32 v23, 6, v23")
    A(f"v_lshrrev_b32 v22, 1, v22")
    A(f"v_lshl_add_u32 v23, v22, 5, v23")
    A(f"v_add_u32 v23, {LDS_GB}, v23")
    for P in range(NP):
        A(f"ds_read_b128 {v(G+8*P,4)}, v23 offset:{P*128}")
        A(f"ds_read_b128 {v(G+8*P+4,4)}, v23 offset:{P*128+16}")
    for j in range(NT):
        for P in range(NP):
            for r in range(4):
                A(f"v_permlane16_swap_b32 v{acc(2*P,j)+r}, v{acc(2*P+1,j)+r}")
    A("s_waitcnt vmcnt(0) lgkmcnt(0)")
    T0 = 22
    for j in range(NT):
        for P in range(NP):
            a0, a1 = acc(2 * P, j), acc(2 * P + 1, j)
            vals = [a0 + r for r in range(4)] + [a1 + r for r in range(4)]
            x = xr[(j, P)]
            for i in range(4):
                A(f"v_cvt_pk_bf16_f32 v{T0+i}, v{vals[2*i]}, v{vals[2*i+1]}")
            for i in range(4):
                A(f"v_lshlrev_b32 v{vals[2*i]}, 16, v{T0+i}")
                A(f"v_and_b32 v{vals[2*i+1]}, 0xffff0000, v{T0+i}")
            for i in range(8): A(f"v_mul_f32 v{vals[i]}, v{vals[i]}, v{G+8*P+i}")
            for i in range(4):
                A(f"v_cvt_pk_bf16_f32 v{T0+i}, v{vals[2*i]}, v{vals[2*i+1]}")
            for i in range(4):
                A(f"v_lshlrev_b32 v{vals[2*i]}, 16, v{T0+i}")
                A(f"v_and_b32 v{vals[2*i+1]}, 0xffff0000, v{T0+i}")
            for i in range(4):
                A(f"v_lshlrev_b32 v{T0+i}, 16, v{x+i}")
                A(f"v_and_b32 v{x+i}, 0xffff0000, v{x+i}")
            for i in range(4):
                A(f"v_add_f32 v{vals[2*i]}, v{vals[2*i]}, v{T0+i}")
                A(f"v_add_f32 v{vals[2*i+1]}, v{vals[2*i+1]}, v{x+i}")
            for i in range(4):
                A(f"v_cvt_pk_bf16_f32 v{x+i}, v{vals[2*i]}, v{vals[2*i+1]}")
            A(f"s_mov_b32 s{sTmp}, {j*16*2048 + P*64}")
            A(f"buffer_store_dwordx4 {v(x,4)}, v{vOut}, s[{sOsrd}:{sOsrd+3}], s{sTmp} offen")
    ST.dump(f"{name}_end")
    if not stamp: A.label(f"{name}_end")
    A("s_endpgm")
    errs = check_hazards(A.lines + bl, name)
    for e in errs: print("HAZARD", e)
    lds = R * SLOT + 512
    text = kernel_header(name) + A.text()
    desc = kernel_desc(name, nvgpr, 102, accum_offset)
    launch = f"; @launch kernel={name} grid=(256,1,1) block=({NW*64},1,1) lds={lds}"
    return text, desc, launch
```

```python
from asmlib import *
from common import *
from sched import Op, resolve
from stamp import Stamper
WS_FLAG = 0x20000

def gen_gemm4b(name="gemm4_kernel", NA=6, DT=4, nomfma=False, stamp=False, x1early=True):
    NW = 4; NT = 2; NN = 8; SPS = 2; R = 4; U = 4
    NITER = 14
    NB = NITER - NA
    ROWB = 256; SLOT = 64 * ROWB
    NDMA = 4
    A = Asm()
    ACC0 = 32
    def acc(T, j): return ACC0 + (T * NT + j) * 4
    nacc = NN * NT * 4
    vr = Regs("v", ACC0 + nacc, 256)
    WF = [[vr.alloc(4, 4) for t in range(NN)] for b in range(2)]
    XR = vr.alloc(32, 4)
    assert vr.next <= 256
    accum_offset = 256
    ar = Regs("a", 0, 256)
    TF = [[[ar.alloc(4, 4) for j in range(NT)] for ks in range(SPS)] for d in range(DT)]
    nvgpr = accum_offset + ar.next
    vRd = [2 + t for t in range(NN)]
    vDma = [16, 17]; vTok = 18; vOut = 19; vLane = 20
    sWsrd = 16; sTsrd = 20; sOsrd = 24; sXsrd = 40
    sW = 28; sM0 = 30; sTmp = 31; sCnt = 32; sWv = 33; sNit = 34; sRole = 35
    sTj = [56, 57]
    LDS_GB = R * SLOT
    ST = Stamper(A, 4, stamp, sbase=78, sws=8, swv=33, vtmp=2)
    ST.mark()
    A(f"s_cmp_ge_u32 s2, 256")
    A(f"s_cbranch_scc1 {name}_end")
    A(f"s_load_dwordx2 s[4:5], s[0:1], {KARG['wd']}")
    A(f"s_load_dwordx2 s[6:7], s[0:1], {KARG['out']}")
    A(f"s_load_dwordx2 s[8:9], s[0:1], {KARG['ws']}")
    A(f"v_lshrrev_b32 v1, 6, v0")
    A(f"v_and_b32 v{vLane}, 63, v0")
    A(f"v_readfirstlane_b32 s{sWv}, v1")
    A(f"s_lshr_b32 s{sRole}, s2, 7")
    A(f"s_and_b32 s10, s2, 127")
    A(f"s_and_b32 s11, s10, 7")
    A(f"s_lshr_b32 s12, s10, 3")
    A(f"s_lshr_b32 s13, s11, 1")
    A(f"s_lshl_b32 s13, s13, 2")
    A(f"s_and_b32 s14, s12, 3")
    A(f"s_add_u32 s13, s13, s14")
    A(f"s_and_b32 s14, s11, 1")
    A(f"s_lshl_b32 s14, s14, 2")
    A(f"s_lshr_b32 s15, s12, 2")
    A(f"s_add_u32 s14, s14, s15")
    A(f"s_cmp_eq_u32 s{sRole}, 0")
    A(f"s_cselect_b32 s{sNit}, {NA}, {NB}")
    A(f"s_cselect_b32 s46, 0, {NA*8}")
    A(f"v_lshrrev_b32 v2, 4, v{vLane}")
    A(f"v_bfe_u32 v3, v{vLane}, 1, 3")
    A(f"v_lshlrev_b32 v5, 11, v2")
    A(f"v_and_b32 v6, 1, v{vLane}")
    A(f"v_lshl_add_u32 v5, v6, 4, v5")
    for e in range(2):
        A(f"v_add_u32 v4, {4*e}, v2")
        A(f"v_xor_b32 v4, v3, v4")
        A(f"v_lshl_add_u32 v{vDma[e]}, v4, 5, v5")
    A(f"v_lshlrev_b32 v{vTok}, 4, v{vLane}")
    A(f"v_lshrrev_b32 v22, 4, v{vLane}")
    A(f"v_bfe_u32 v24, v{vLane}, 2, 2")
    A(f"v_and_b32 v25, 3, v{vLane}")
    A(f"v_lshl_add_u32 v27, v22, 2, v24")
    A(f"v_lshlrev_b32 v26, 8, v27")
    A(f"v_lshl_add_u32 v26, v25, 3, v26")
    A(f"v_and_b32 v27, 7, v27")
    for T in range(NN):
        A(f"v_xor_b32 v28, {T}, v27")
        A(f"v_lshl_add_u32 v{vRd[T]}, v28, 5, v26")
    A(f"v_and_b32 v23, 15, v{vLane}")
    A(f"v_lshlrev_b32 v{vOut}, 11, v23")
    A(f"v_and_b32 v28, 1, v22")
    A(f"v_lshl_add_u32 v{vOut}, v28, 5, v{vOut}")
    A(f"v_lshrrev_b32 v28, 1, v22")
    A(f"v_lshl_add_u32 v{vOut}, v28, 4, v{vOut}")
    A(f"s_waitcnt lgkmcnt(0)")
    ST.mark()
    A(f"s_lshl_b32 s36, s46, 16")
    A(f"s_mul_i32 s37, s{sWv}, {NDMA*4*2048}")
    A(f"s_add_u32 s36, s36, s37")
    A(f"s_lshl_b32 s37, s14, 8")
    A(f"s_add_u32 s36, s36, s37")
    A(f"s_add_u32 s{sWsrd}, s4, s36")
    A(f"s_addc_u32 s{sWsrd+1}, s5, 0")
    A(f"s_sub_u32 s{sWsrd+2}, {3584*2048}, s36")
    A(f"s_mov_b32 s{sWsrd+3}, 0x20000")
    A(f"s_mul_i32 s{sM0}, s{sWv}, {NDMA*1024}")
    A(f"s_lshl_b32 s38, s13, 3")
    A(f"s_lshl_b32 s36, s{sWv}, 1")
    A(f"s_add_u32 s38, s38, s36")
    A(f"s_mul_i32 s36, s38, {112*1024}")
    A(f"s_lshl_b32 s37, s46, 10")
    A(f"s_add_u32 s36, s36, s37")
    A(f"s_add_u32 s36, s36, {WS_ACT}")
    A(f"s_add_u32 s{sTsrd}, s8, s36")
    A(f"s_addc_u32 s{sTsrd+1}, s9, 0")
    A(f"s_sub_u32 s{sTsrd+2}, {NT*112*1024}, s37")
    A(f"s_mov_b32 s{sTsrd+3}, 0x20000")
    A(f"s_lshl_b32 s36, s38, 15")
    A(f"s_lshl_b32 s37, s14, 8")
    A(f"s_add_u32 s36, s36, s37")
    A(f"s_add_u32 s{sOsrd}, s6, s36")
    A(f"s_addc_u32 s{sOsrd+1}, s7, 0")
    A(f"s_sub_u32 s{sOsrd+2}, {2048*2048}, s36")
    A(f"s_mov_b32 s{sOsrd+3}, 0x20000")
    A(f"s_add_u32 s37, s36, {WS_X1}")
    A(f"s_add_u32 s{sXsrd}, s8, s37")
    A(f"s_addc_u32 s{sXsrd+1}, s9, 0")
    A(f"s_sub_u32 s{sXsrd+2}, {2048*2048}, s36")
    A(f"s_mov_b32 s{sXsrd+3}, 0x20000")
    A(f"s_lshl_b32 s36, s10, 16")
    A(f"s_lshl_b32 s37, s{sWv}, 14")
    A(f"s_add_u32 s36, s36, s37")
    A(f"s_add_u32 s36, s36, {WS_PART}")
    A(f"s_add_u32 s48, s8, s36")
    A(f"s_addc_u32 s49, s9, 0")
    A(f"s_lshl_b32 s36, s10, 7")
    A(f"s_add_u32 s36, s36, {WS_FLAG}")
    A(f"s_add_u32 s50, s8, s36")
    A(f"s_addc_u32 s51, s9, 0")
    vG = 12
    A(f"s_lshl_b32 s37, s14, 9")
    A(f"s_and_b32 s36, s{sWv}, 1")
    A(f"s_lshl_b32 s36, s36, 8")
    A(f"s_add_u32 s37, s37, s36")
    A(f"s_add_u32 s37, s37, {WS_MODP2 + 3072*4}")
    A(f"s_add_u32 s44, s8, s37")
    A(f"s_addc_u32 s45, s9, 0")
    A(f"v_lshlrev_b32 v28, 2, v{vLane}")
    A(f"v_add_u32 v29, 16384, v28")
    gb_load = [Op(f"global_load_dword v{vG}, v28, s[44:45]", vm=lambda it: ('G', 0)),
               Op(f"global_load_dword v{vG+1}, v29, s[44:45]", vm=lambda it: ('G', 1))]
    gb_proc = [Op(wait_vm=lambda it: [('G', 0), ('G', 1)])]
    for t in [f"v_add_f32 v{vG}, v{vG}, v{vG+1}",
              f"v_cvt_pk_bf16_f32 v{vG}, v{vG}, v{vG}",
              f"v_and_b32 v{vG}, 0xffff0000, v{vG}",
              f"v_add_u32 v28, {LDS_GB}, v28",
              f"v_add_u32 v28, s36, v28",
              f"ds_write_b32 v28, v{vG}",
              f"s_waitcnt lgkmcnt(0)"]:
        gb_proc.append(Op(t))

    def dma_ops(tag, slot, k):
        return [Op(f"s_add_u32 m0, s{sM0}, {slot*SLOT + k*1024}"),
                Op(f"s_add_u32 s{sTmp}, s{sW}, {k*4*2048}"),
                Op(f"buffer_load_dwordx4 v{vDma[k&1]}, s[{sWsrd}:{sWsrd+3}], s{sTmp} offen lds", vm=tag)]
    def tok_op(ring, ks, j, tag):
        return Op(f"buffer_load_dwordx4 {a(TF[ring][ks][j],4)}, v{vTok}, s[{sTsrd}:{sTsrd+3}], s{sTj[j]} offen offset:{ks*1024}", vm=tag)
    def set_T(stage): return [Op(f"s_mov_b32 s{sTj[j]}, {j*112*1024 + stage*SPS*1024}") for j in range(NT)]
    def inc_T(): return [Op(f"s_add_u32 s{sTj[j]}, s{sTj[j]}, {SPS*1024}") for j in range(NT)]
    STB = 64 * 2048
    pro = []
    pro.append(Op(f"s_mov_b32 s{sW}, 0"))
    for st in range(max(R - 1, DT)):
        if st < R - 1:
            for k in range(NDMA): pro += dma_ops((lambda it, st=st, k=k: ('W', st, k)), st, k)
            pro.append(Op(f"s_add_u32 s{sW}, s{sW}, {STB}"))
        if st < DT:
            pro += set_T(st)
            for ks in range(SPS):
                if st == DT - 1 and ks == SPS - 1: continue
                for j in range(NT):
                    pro.append(tok_op(st, ks, j, (lambda it, st=st, ks=ks, j=j: ('T', st, ks, j))))
        if st == 0: pro += gb_load
    for r in range(nacc): pro.append(Op(f"v_mov_b32 v{ACC0+r}, 0"))
    pro += gb_proc
    pro.append(Op(f"s_mov_b32 s{sCnt}, 0"))
    pro.append(Op(wait_vm=lambda it: [('W', 0, k) for k in range(NDMA)]))
    pro.append(Op("s_barrier"))
    def rd_ops(buf, slot, ks):
        o = []
        for T in range(NN):
            for q in range(2):
                o.append(Op(f"ds_read_b64_tr_b16 {v(WF[buf][T]+2*q,2)}, v{vRd[T]} offset:{slot*SLOT + ks*8192 + q*4096}"))
        return o
    pro += rd_ops(0, 0, 0)
    body = []
    for st in range(U):
        for ks in range(SPS):
            cur = (st * SPS + ks) & 1
            nst, nks = (st, ks + 1) if ks < SPS - 1 else (st + 1, 0)
            pst, pks = (st, ks - 1) if ks > 0 else (st - 1, SPS - 1)
            tk = [tok_op((pst % DT), pks, j, (lambda it, pst=pst, pks=pks, j=j: ('T', it * U + pst + DT, pks, j))) for j in range(NT)]
            tkinc = inc_T() if ks == 0 else []
            dm = [dma_ops((lambda it, st=st, k=k: ('W', it * U + st + R - 1, k)), (st + R - 1) % R, k) for k in range(ks * 2, ks * 2 + 2)]
            dmend = [Op(f"s_add_u32 s{sW}, s{sW}, {STB}")] if ks == SPS - 1 else []
            rd = rd_ops(cur ^ 1, nst % R, nks)
            head = [Op("s_waitcnt lgkmcnt(0)"),
                    Op(wait_vm=lambda it, st=st, ks=ks: [('T', it * U + st, ks, j) for j in range(NT)])]
            mf = []
            for T in range(NN):
                for j in range(NT):
                    if nomfma: mf.append(Op("s_nop 0"))
                    else: mf.append(Op(f"v_mfma_f32_16x16x32_bf16 {v(acc(T,j),4)}, {v(WF[cur][T],4)}, {a(TF[st%DT][ks][j],4)}, {v(acc(T,j),4)}"))
            nm = len(mf)
            gaps = [[] for _ in range(nm)]
            if ks == SPS - 1:
                gaps[0] += [Op(wait_vm=lambda it, st=st: [('W', it * U + st + 1, k) for k in range(NDMA)]), Op("s_barrier")]
            for i, o in enumerate(rd): gaps[min(i * 10 // 16, nm - 1)].append(o)
            gaps[3] += [tk[0]]; gaps[6] += [tk[1]] + tkinc
            gaps[10] += dm[0]; gaps[13] += dm[1]
            gaps[nm - 1] += dmend
            body += head
            for g in range(nm):
                body.append(mf[g]); body += gaps[g]
    body.append(Op(f"s_add_u32 s{sCnt}, s{sCnt}, 1"))
    body.append(Op(f"s_cmp_lt_u32 s{sCnt}, s{sNit}"))
    pl, bl, _ = resolve(pro, body, NB)
    for l in pl: A(l)
    ST.mark()
    A(".p2align 6")
    A.label(f"{name}_loop")
    for l in bl: A(l)
    A(f"s_cbranch_scc1 {name}_loop")
    ST.mark(8)
    A(f"s_cmp_eq_u32 s{sRole}, 0")
    A(f"s_cbranch_scc0 {name}_cons")
    A.nop(8)
    A(f"v_lshlrev_b32 v22, 4, v{vLane}")
    for i in range(16):
        if i == 4 or i == 8 or i == 12: A(f"v_add_u32 v22, 4096, v22")
        A(f"global_store_dwordx4 v22, {v(ACC0+4*i,4)}, s[48:49] offset:{(i&3)*1024} sc1")
    A("s_waitcnt vmcnt(0)")
    A("s_barrier")
    A(f"s_cmp_eq_u32 s{sWv}, 0")
    A(f"s_cbranch_scc0 {name}_fin")
    A("s_mov_b64 exec, 1")
    A("v_mov_b32 v22, 0")
    A("v_mov_b32 v23, 1")
    A("global_store_dword v22, v23, s[50:51] sc1")
    A("s_mov_b64 exec, -1")
    A(f"s_branch {name}_fin")
    A.label(f"{name}_cons")
    A("s_waitcnt vmcnt(0)")
    NP = NN // 2
    xr = {}
    k = 0
    for j in range(NT):
        for P in range(NP):
            xr[(j, P)] = XR + 4 * k; k += 1
            A(f"s_mov_b32 s{sTmp}, {j*16*2048 + P*64}")
            A(f"buffer_load_dwordx4 {v(xr[(j,P)],4)}, v{vOut}, s[{sXsrd}:{sXsrd+3}], s{sTmp} offen")
    A("v_mov_b32 v22, 0")
    A.label(f"{name}_poll")
    A("global_load_dword v23, v22, s[50:51] sc1")
    A("s_waitcnt vmcnt(0)")
    A("v_readfirstlane_b32 s36, v23")
    A.nop(1)
    A("s_cmp_eq_u32 s36, 1")
    A(f"s_cbranch_scc1 {name}_got")
    A("s_sleep 2")
    A(f"s_branch {name}_poll")
    A.label(f"{name}_got")
    ST.mark(9)
    PR = WF[0][0]
    A(f"v_lshlrev_b32 v22, 4, v{vLane}")
    for i in range(16):
        if i == 4 or i == 8 or i == 12: A(f"v_add_u32 v22, 4096, v22")
        A(f"global_load_dwordx4 {v(PR+4*i,4)}, v22, s[48:49] offset:{(i&3)*1024} sc1")
    G = 2
    A(f"v_lshrrev_b32 v24, 4, v{vLane}")
    A(f"v_and_b32 v25, 1, v24")
    A(f"v_lshlrev_b32 v25, 6, v25")
    A(f"v_lshrrev_b32 v24, 1, v24")
    A(f"v_lshl_add_u32 v25, v24, 5, v25")
    A(f"v_add_u32 v25, {LDS_GB}, v25")
    for i in range(16):
        A(f"s_waitcnt vmcnt({15-i})")
        for r in range(0, 4, 2):
            A(f"v_pk_add_f32 {v(ACC0+4*i+r,2)}, {v(ACC0+4*i+r,2)}, {v(PR+4*i+r,2)}")
    for j in range(NT):
        for P in range(NP):
            for r in range(4):
                A(f"v_permlane16_swap_b32 v{acc(2*P,j)+r}, v{acc(2*P+1,j)+r}")
    T0 = 26
    for P in range(NP):
        A(f"ds_read_b128 {v(2,4)}, v25 offset:{P*128}")
        A(f"ds_read_b128 {v(6,4)}, v25 offset:{P*128+16}")
        A("s_waitcnt lgkmcnt(0)")
        for j in range(NT):
            a0, a1 = acc(2 * P, j), acc(2 * P + 1, j)
            vals = [a0 + r for r in range(4)] + [a1 + r for r in range(4)]
            x = xr[(j, P)]
            for i in range(4): A(f"v_cvt_pk_bf16_f32 v{T0+i}, v{vals[2*i]}, v{vals[2*i+1]}")
            for i in range(4):
                A(f"v_lshlrev_b32 v{vals[2*i]}, 16, v{T0+i}")
                A(f"v_and_b32 v{vals[2*i+1]}, 0xffff0000, v{T0+i}")
            for i in range(8): A(f"v_mul_f32 v{vals[i]}, v{vals[i]}, v{2+i}")
            for i in range(4): A(f"v_cvt_pk_bf16_f32 v{T0+i}, v{vals[2*i]}, v{vals[2*i+1]}")
            for i in range(4):
                A(f"v_lshlrev_b32 v{vals[2*i]}, 16, v{T0+i}")
                A(f"v_and_b32 v{vals[2*i+1]}, 0xffff0000, v{T0+i}")
            for i in range(4):
                A(f"v_lshlrev_b32 v{T0+i}, 16, v{x+i}")
                A(f"v_and_b32 v{x+i}, 0xffff0000, v{x+i}")
            for i in range(4):
                A(f"v_add_f32 v{vals[2*i]}, v{vals[2*i]}, v{T0+i}")
                A(f"v_add_f32 v{vals[2*i+1]}, v{vals[2*i+1]}, v{x+i}")
            for i in range(4): A(f"v_cvt_pk_bf16_f32 v{x+i}, v{vals[2*i]}, v{vals[2*i+1]}")
            A(f"s_mov_b32 s{sTmp}, {j*16*2048 + P*64}")
            A(f"buffer_store_dwordx4 {v(x,4)}, v{vOut}, s[{sOsrd}:{sOsrd+3}], s{sTmp} offen")
    A.label(f"{name}_fin")
    ST.dump(f"{name}_end")
    if not stamp: A.label(f"{name}_end")
    A("s_endpgm")
    errs = check_hazards(A.lines + bl, name)
    for e in errs: print("HAZARD", e)
    lds = R * SLOT + 1024
    text = kernel_header(name) + A.text()
    desc = kernel_desc(name, nvgpr, 102, accum_offset)
    launch = f"; @launch kernel={name} grid=(256,1,1) block=({NW*64},1,1) lds={lds}"
    return text, desc, launch
```

```python
from asmlib import *
from common import *
from sched import Op, resolve
from stamp import Stamper
WS_FLAG = 0x20000

def gen_gemm4c(name="gemm4_kernel", NA=6, DT=4, R=4, nomfma=False, stamp=False, xmap=0):
    NW = 4; NN = 4; SPS = 4; U = max(R, DT)
    assert U % R == 0 and U % DT == 0
    NSTG = 56
    NITER = NSTG // U
    NA = NA * 4 // U
    NB = NITER - NA
    ROWB = 256; SLOT = 64 * ROWB
    NDMA = 4
    A = Asm()
    ACC0 = 32
    def acc(T): return ACC0 + T * 16
    nacc = NN * 16
    vr = Regs("v", ACC0 + nacc, 256)
    WF = [[[vr.alloc(4, 4) for t in range(NN)] for kk in range(2)] for b in range(2)]
    PR = WF[0][0][0]
    XR = vr.alloc(32, 4)
    GB = 2
    accum_offset = 256
    if DT <= 4:
        TF = [[vr.alloc(4, 4) for ks in range(SPS)] for d in range(DT)]
        nvgpr = 256; tf = v
    else:
        ar = Regs("a", 0, 256)
        TF = [[ar.alloc(4, 4) for ks in range(SPS)] for d in range(DT)]
        nvgpr = 256 + ar.next; tf = a
    vRd = [2 + t for t in range(NN)]
    vRd2 = [6 + t for t in range(NN)]
    vDma = 16; vTok = 18; vOut = 19; vLane = 20
    sWsrd = 16; sTsrd = 20; sOsrd = 24; sXsrd = 40
    sW = 28; sM0 = 30; sTmp = 31; sCnt = 32; sWv = 33; sNit = 34; sRole = 35
    sT = 56
    LDS_GB = R * SLOT
    ST = Stamper(A, 4, stamp, sbase=78, sws=8, swv=33, vtmp=2)
    ST.mark()
    A(f"s_cmp_ge_u32 s2, 256")
    A(f"s_cbranch_scc1 {name}_end")
    A(f"s_load_dwordx2 s[4:5], s[0:1], {KARG['wd']}")
    A(f"s_load_dwordx2 s[6:7], s[0:1], {KARG['out']}")
    A(f"s_load_dwordx2 s[8:9], s[0:1], {KARG['ws']}")
    A(f"v_lshrrev_b32 v1, 6, v0")
    A(f"v_and_b32 v{vLane}, 63, v0")
    A(f"v_readfirstlane_b32 s{sWv}, v1")
    if xmap == 0:
        A(f"s_lshr_b32 s{sRole}, s2, 7")
        A(f"s_and_b32 s10, s2, 127")
        A(f"s_and_b32 s11, s10, 7")
        A(f"s_lshr_b32 s12, s10, 3")
        A(f"s_lshr_b32 s13, s11, 1")
        A(f"s_lshl_b32 s13, s13, 2")
        A(f"s_and_b32 s14, s12, 3")
        A(f"s_add_u32 s13, s13, s14")
        A(f"s_and_b32 s14, s11, 1")
        A(f"s_lshl_b32 s14, s14, 2")
        A(f"s_lshr_b32 s15, s12, 2")
        A(f"s_add_u32 s14, s14, s15")
    elif xmap == 2:
        A(f"s_and_b32 s{sRole}, s2, 1")
        A(f"s_bfe_u32 s11, s2, 0x20001")
        A(f"s_lshr_b32 s12, s2, 3")
        A(f"s_lshl_b32 s13, s11, 2")
        A(f"s_and_b32 s14, s12, 3")
        A(f"s_add_u32 s13, s13, s14")
        A(f"s_lshr_b32 s14, s12, 2")
        A(f"s_lshl_b32 s10, s13, 3")
        A(f"s_add_u32 s10, s10, s14")
    elif xmap == 3:
        A(f"s_lshr_b32 s{sRole}, s2, 7")
        A(f"s_and_b32 s11, s2, 7")
        A(f"s_bfe_u32 s12, s2, 0x40003")
        A(f"s_lshl_b32 s13, s11, 1")
        A(f"s_and_b32 s14, s12, 1")
        A(f"s_add_u32 s13, s13, s14")
        A(f"s_lshr_b32 s14, s12, 1")
        A(f"s_lshl_b32 s10, s13, 3")
        A(f"s_add_u32 s10, s10, s14")
    else:
        A(f"s_and_b32 s{sRole}, s2, 1")
        A(f"s_bfe_u32 s11, s2, 0x20001")
        A(f"s_lshr_b32 s12, s2, 3")
        A(f"s_lshr_b32 s13, s11, 1")
        A(f"s_lshl_b32 s13, s13, 3")
        A(f"s_and_b32 s14, s12, 7")
        A(f"s_add_u32 s13, s13, s14")
        A(f"s_and_b32 s14, s11, 1")
        A(f"s_lshl_b32 s14, s14, 2")
        A(f"s_lshr_b32 s15, s12, 3")
        A(f"s_add_u32 s14, s14, s15")
        A(f"s_lshl_b32 s10, s13, 3")
        A(f"s_add_u32 s10, s10, s14")
    A(f"s_cmp_eq_u32 s{sRole}, 0")
    A(f"s_cselect_b32 s{sNit}, {NA}, {NB}")
    A(f"s_cselect_b32 s46, 0, {NA*U*4}")
    A(f"v_lshrrev_b32 v2, 4, v{vLane}")
    A(f"v_bfe_u32 v3, v{vLane}, 2, 2")
    A(f"v_xor_b32 v3, v3, v2")
    A(f"v_lshlrev_b32 v5, 11, v2")
    A(f"v_lshl_add_u32 v5, v3, 6, v5")
    A(f"v_and_b32 v6, 3, v{vLane}")
    A(f"v_lshl_add_u32 v{vDma}, v6, 4, v5")
    A(f"v_lshlrev_b32 v{vTok}, 4, v{vLane}")
    A(f"v_lshrrev_b32 v22, 5, v{vLane}")
    A(f"v_bfe_u32 v24, v{vLane}, 2, 2")
    A(f"v_lshl_add_u32 v27, v22, 3, v24")
    A(f"v_lshlrev_b32 v26, 8, v27")
    A(f"v_and_b32 v25, 1, v{vLane}")
    A(f"v_lshl_add_u32 v26, v25, 5, v26")
    A(f"v_bfe_u32 v25, v{vLane}, 4, 1")
    A(f"v_lshl_add_u32 v26, v25, 4, v26")
    A(f"v_bfe_u32 v25, v{vLane}, 1, 1")
    A(f"v_lshl_add_u32 v26, v25, 3, v26")
    for T in range(NN):
        A(f"v_xor_b32 v28, {T}, v24")
        A(f"v_lshl_add_u32 v{vRd[T]}, v28, 6, v26")
        A(f"v_add_u32 v{vRd2[T]}, 0x10000, v{vRd[T]}")
    A(f"v_and_b32 v23, 31, v{vLane}")
    A(f"v_lshlrev_b32 v{vOut}, 11, v23")
    A(f"v_lshl_add_u32 v{vOut}, v22, 5, v{vOut}")
    A(f"s_waitcnt lgkmcnt(0)")
    ST.mark()
    A(f"s_lshl_b32 s36, s46, 15")
    A(f"s_mul_i32 s37, s{sWv}, {NDMA*4*2048}")
    A(f"s_add_u32 s36, s36, s37")
    A(f"s_lshl_b32 s37, s14, 8")
    A(f"s_add_u32 s36, s36, s37")
    A(f"s_add_u32 s{sWsrd}, s4, s36")
    A(f"s_addc_u32 s{sWsrd+1}, s5, 0")
    A(f"s_sub_u32 s{sWsrd+2}, {3584*2048}, s36")
    A(f"s_mov_b32 s{sWsrd+3}, 0x20000")
    A(f"s_mul_i32 s{sM0}, s{sWv}, {NDMA*1024}")
    A(f"s_lshl_b32 s38, s13, 2")
    A(f"s_add_u32 s38, s38, s{sWv}")
    A(f"s_mul_i32 s36, s38, {224*1024}")
    A(f"s_lshl_b32 s37, s46, 10")
    A(f"s_add_u32 s36, s36, s37")
    A(f"s_add_u32 s36, s36, {WS_ACT}")
    A(f"s_add_u32 s{sTsrd}, s8, s36")
    A(f"s_addc_u32 s{sTsrd+1}, s9, 0")
    A(f"s_sub_u32 s{sTsrd+2}, {224*1024}, s37")
    A(f"s_mov_b32 s{sTsrd+3}, 0x20000")
    A(f"s_lshl_b32 s36, s38, 16")
    A(f"s_lshl_b32 s37, s14, 8")
    A(f"s_add_u32 s36, s36, s37")
    A(f"s_add_u32 s{sOsrd}, s6, s36")
    A(f"s_addc_u32 s{sOsrd+1}, s7, 0")
    A(f"s_sub_u32 s{sOsrd+2}, {2048*2048}, s36")
    A(f"s_mov_b32 s{sOsrd+3}, 0x20000")
    A(f"s_add_u32 s37, s36, {WS_X1}")
    A(f"s_add_u32 s{sXsrd}, s8, s37")
    A(f"s_addc_u32 s{sXsrd+1}, s9, 0")
    A(f"s_sub_u32 s{sXsrd+2}, {2048*2048}, s36")
    A(f"s_mov_b32 s{sXsrd+3}, 0x20000")
    A(f"s_lshl_b32 s36, s10, 16")
    A(f"s_lshl_b32 s37, s{sWv}, 14")
    A(f"s_add_u32 s36, s36, s37")
    A(f"s_add_u32 s36, s36, {WS_PART}")
    A(f"s_add_u32 s48, s8, s36")
    A(f"s_addc_u32 s49, s9, 0")
    A(f"s_lshl_b32 s36, s10, 7")
    A(f"s_add_u32 s36, s36, {WS_FLAG}")
    A(f"s_add_u32 s50, s8, s36")
    A(f"s_addc_u32 s51, s9, 0")
    vG = 12
    A(f"s_lshl_b32 s37, s14, 9")
    A(f"s_and_b32 s36, s{sWv}, 1")
    A(f"s_lshl_b32 s36, s36, 8")
    A(f"s_add_u32 s37, s37, s36")
    A(f"s_add_u32 s37, s37, {WS_MODP2 + 3072*4}")
    A(f"s_add_u32 s44, s8, s37")
    A(f"s_addc_u32 s45, s9, 0")
    A(f"v_lshlrev_b32 v28, 2, v{vLane}")
    A(f"v_add_u32 v29, 16384, v28")
    gb_load = [Op(f"global_load_dword v{vG}, v28, s[44:45]", vm=lambda it: ('G', 0)),
               Op(f"global_load_dword v{vG+1}, v29, s[44:45]", vm=lambda it: ('G', 1))]
    gb_proc = [Op(wait_vm=lambda it: [('G', 0), ('G', 1)])]
    for t in [f"v_add_f32 v{vG}, v{vG}, v{vG+1}", f"v_cvt_pk_bf16_f32 v{vG}, v{vG}, v{vG}", f"v_and_b32 v{vG}, 0xffff0000, v{vG}",
              f"v_add_u32 v28, {LDS_GB}, v28", f"v_add_u32 v28, s36, v28", f"ds_write_b32 v28, v{vG}", f"s_waitcnt lgkmcnt(0)"]:
        gb_proc.append(Op(t))
    x_load = []
    for T in range(NN):
        for hf in range(2):
            x_load.append(Op(f"buffer_load_dwordx4 {v(XR+8*T+4*hf,4)}, v{vOut}, s[{sXsrd}:{sXsrd+3}], 0 offen offset:{T*64+hf*16}", vm=lambda it, T=T, hf=hf: ('X', T, hf)))
    def dma_ops(tag, slot, k):
        return [Op(f"s_add_u32 m0, s{sM0}, {slot*SLOT + k*1024}"),
                Op(f"s_add_u32 s{sTmp}, s{sW}, {k*4*2048}"),
                Op(f"buffer_load_dwordx4 v{vDma}, s[{sWsrd}:{sWsrd+3}], s{sTmp} offen lds", vm=tag)]
    def tok_op(ring, ks, tag):
        return Op(f"buffer_load_dwordx4 {tf(TF[ring][ks],4)}, v{vTok}, s[{sTsrd}:{sTsrd+3}], s{sT} offen offset:{ks*1024}", vm=tag)
    STB = 64 * 2048
    pro = []
    pro.append(Op(f"s_mov_b32 s{sW}, 0"))
    for st in range(max(R - 1, DT)):
        if st < R - 1:
            for k in range(NDMA): pro += dma_ops((lambda it, st=st, k=k: ('W', st, k)), st, k)
            pro.append(Op(f"s_add_u32 s{sW}, s{sW}, {STB}"))
        if st < DT:
            pro.append(Op(f"s_mov_b32 s{sT}, {st*4096}"))
            for ks in range(SPS):
                if st == DT - 1 and ks == SPS - 1: continue
                pro.append(tok_op(st, ks, (lambda it, st=st, ks=ks: ('T', st, ks))))
        if st == 0: pro += gb_load
    pro += x_load
    for r in range(nacc): pro.append(Op(f"v_mov_b32 v{ACC0+r}, 0"))
    pro += gb_proc
    pro.append(Op(f"s_mov_b32 s{sCnt}, 0"))
    pro.append(Op(wait_vm=lambda it: [('W', 0, k) for k in range(NDMA)]))
    pro.append(Op("s_barrier"))
    def rd_ops(buf, slot, ds):
        return [Op(f"ds_read_b64_tr_b16 {v(WF[buf][kk][T]+2*q,2)}, v{(vRd if slot < 4 else vRd2)[T]} offset:{(slot&3)*SLOT + (2*ds+kk)*4096 + q*1024}") for kk in range(2) for T in range(NN) for q in range(2)]
    pro += rd_ops(0, 0, 0)
    body = []
    for st in range(U):
        for ds in range(2):
            cur = (st * 2 + ds) & 1
            nst, nds = (st, 1) if ds == 0 else (st + 1, 0)
            pst, pds = (st, 0) if ds == 1 else (st - 1, 1)
            tk = [tok_op((pst % DT), 2 * pds + kk, (lambda it, pst=pst, pds=pds, kk=kk: ('T', it * U + pst + DT, 2 * pds + kk))) for kk in range(2)]
            tkinc = [Op(f"s_add_u32 s{sT}, s{sT}, 4096")] if ds == 0 else []
            dm = [dma_ops((lambda it, st=st, k=k: ('W', it * U + st + R - 1, k)), (st + R - 1) % R, k) for k in (2 * ds, 2 * ds + 1)]
            dmend = [Op(f"s_add_u32 s{sW}, s{sW}, {STB}")] if ds == 1 else []
            rd = rd_ops(cur ^ 1, nst % R, nds)
            head = [Op("s_waitcnt lgkmcnt(0)"), Op(wait_vm=lambda it, st=st, ds=ds: [('T', it * U + st, 2 * ds), ('T', it * U + st, 2 * ds + 1)])]
            mf = []
            for kk in range(2):
                for T in range(NN):
                    if nomfma: mf.append(Op("s_nop 0"))
                    else: mf.append(Op(f"v_mfma_f32_32x32x16_bf16 {v(acc(T),16)}, {v(WF[cur][kk][T],4)}, {tf(TF[st%DT][2*ds+kk],4)}, {v(acc(T),16)}"))
            gaps = [[] for _ in range(8)]
            if ds == 1:
                gaps[0] += [Op(wait_vm=lambda it, st=st: [('W', it * U + st + 1, k) for k in range(NDMA)]), Op("s_barrier")]
            for i in range(16): gaps[i * 5 // 16].append(rd[i])
            gaps[4] += [tk[0]]; gaps[5] += [tk[1]] + tkinc
            gaps[6] += dm[0]; gaps[7] += dm[1] + dmend
            body += head
            for g in range(8):
                body.append(mf[g]); body += gaps[g]
    body.append(Op(f"s_add_u32 s{sCnt}, s{sCnt}, 1"))
    body.append(Op(f"s_cmp_lt_u32 s{sCnt}, s{sNit}"))
    pl, bl, _ = resolve(pro, body, NB)
    for l in pl: A(l)
    ST.mark()
    A(".p2align 6")
    A.label(f"{name}_loop")
    for l in bl: A(l)
    A(f"s_cbranch_scc1 {name}_loop")
    ST.mark(8)
    A(f"s_cmp_eq_u32 s{sRole}, 0")
    A(f"s_cbranch_scc0 {name}_cons")
    A.nop(12)
    A(f"v_lshlrev_b32 v22, 4, v{vLane}")
    for i in range(16):
        if i == 4 or i == 8 or i == 12: A(f"v_add_u32 v22, 4096, v22")
        A(f"global_store_dwordx4 v22, {v(ACC0+4*i,4)}, s[48:49] offset:{(i&3)*1024} sc1")
    A("s_waitcnt vmcnt(0)")
    A("s_barrier")
    A(f"s_cmp_eq_u32 s{sWv}, 0")
    A(f"s_cbranch_scc0 {name}_fin")
    A("s_mov_b64 exec, 1")
    A("v_mov_b32 v22, 0")
    A("v_mov_b32 v23, 1")
    A("global_store_dword v22, v23, s[50:51] sc1")
    A("s_mov_b64 exec, -1")
    A(f"s_branch {name}_fin")
    A.label(f"{name}_cons")
    A("v_mov_b32 v22, 0")
    A.label(f"{name}_poll")
    A("global_load_dword v23, v22, s[50:51] sc1")
    A("s_waitcnt vmcnt(0)")
    A("v_readfirstlane_b32 s36, v23")
    A.nop(1)
    A("s_cmp_eq_u32 s36, 1")
    A(f"s_cbranch_scc1 {name}_got")
    A("s_sleep 2")
    A(f"s_branch {name}_poll")
    A.label(f"{name}_got")
    ST.mark(9)
    A(f"v_lshlrev_b32 v22, 4, v{vLane}")
    for i in range(16):
        if i == 4 or i == 8 or i == 12: A(f"v_add_u32 v22, 4096, v22")
        A(f"global_load_dwordx4 {v(PR+4*i,4)}, v22, s[48:49] offset:{(i&3)*1024} sc1")
    A(f"v_lshrrev_b32 v25, 5, v{vLane}")
    A(f"v_lshlrev_b32 v25, 6, v25")
    A(f"v_add_u32 v25, {LDS_GB}, v25")
    T0 = 26
    for T in range(NN):
        for qd in range(4): A(f"ds_read_b128 {v(GB+4*qd,4)}, v25 offset:{T*128+qd*16}")
        A(f"s_waitcnt vmcnt({12-4*T})")
        a0 = acc(T)
        for r in range(0, 16, 2): A(f"v_pk_add_f32 {v(a0+r,2)}, {v(a0+r,2)}, {v(PR+16*T+r,2)}")
        A("s_waitcnt lgkmcnt(0)")
        for hf in range(2):
            vals = [a0 + 8 * hf + r for r in range(8)]
            x = XR + 8 * T + 4 * hf
            for i in range(4): A(f"v_cvt_pk_bf16_f32 v{T0+i}, v{vals[2*i]}, v{vals[2*i+1]}")
            for i in range(4):
                A(f"v_lshlrev_b32 v{vals[2*i]}, 16, v{T0+i}")
                A(f"v_and_b32 v{vals[2*i+1]}, 0xffff0000, v{T0+i}")
            for i in range(4): A(f"v_pk_mul_f32 {v(vals[2*i],2)}, {v(vals[2*i],2)}, {v(GB+8*hf+2*i,2)}")
            for i in range(4): A(f"v_cvt_pk_bf16_f32 v{T0+i}, v{vals[2*i]}, v{vals[2*i+1]}")
            for i in range(4):
                A(f"v_lshlrev_b32 v{vals[2*i]}, 16, v{T0+i}")
                A(f"v_and_b32 v{vals[2*i+1]}, 0xffff0000, v{T0+i}")
            for i in range(4):
                A(f"v_lshlrev_b32 v{T0+i}, 16, v{x+i}")
                A(f"v_and_b32 v{x+i}, 0xffff0000, v{x+i}")
            for i in range(4):
                A(f"v_add_f32 v{vals[2*i]}, v{vals[2*i]}, v{T0+i}")
                A(f"v_add_f32 v{vals[2*i+1]}, v{vals[2*i+1]}, v{x+i}")
            for i in range(4): A(f"v_cvt_pk_bf16_f32 v{x+i}, v{vals[2*i]}, v{vals[2*i+1]}")
            A(f"buffer_store_dwordx4 {v(x,4)}, v{vOut}, s[{sOsrd}:{sOsrd+3}], 0 offen offset:{T*64+hf*16}")
    A.label(f"{name}_fin")
    ST.dump(f"{name}_end")
    if not stamp: A.label(f"{name}_end")
    A("s_endpgm")
    errs = check_hazards(A.lines + bl, name)
    for e in errs: print("HAZARD", e)
    lds = R * SLOT + 1024
    text = kernel_header(name) + A.text()
    desc = kernel_desc(name, nvgpr, 102, accum_offset)
    launch = f"; @launch kernel={name} grid=(256,1,1) block=({NW*64},1,1) lds={lds}"
    return text, desc, launch
```

```python
from asmlib import *
from common import *
from sched import Op, resolve
from stamp import Stamper
WS_FLAG = 0x20000

def gen_gemm4d(name="gemm4_kernel", NA=6, nomfma=False, stamp=False, early=True):
    NW = 4; NT = 2; NN = 8; SPS = 2; R = 4; U = 4; DT = 4
    NITER = 14
    NB = NITER - NA
    ROWB = 256; SLOT = 64 * ROWB
    NDMA = 4
    A = Asm()
    ACC0 = 32
    def acc(T, j): return ACC0 + (T * NT + j) * 4
    nacc = 64
    vr = Regs("v", ACC0 + nacc, 256)
    WF = [[vr.alloc(4, 4) for t in range(NN)] for b in range(2)]
    XR = vr.alloc(32, 4)
    PR = vr.alloc(64, 4)
    accum_offset = 256
    ar = Regs("a", 0, 256)
    TF = [[[ar.alloc(4, 4) for j in range(NT)] for ks in range(SPS)] for d in range(DT)]
    nvgpr = accum_offset + ar.next
    vRd = [2 + t for t in range(NN)]
    vDma = [16, 17]; vTok = 18; vOut = 19; vLane = 20
    sWsrd = 16; sTsrd = 20; sOsrd = 24; sXsrd = 40
    sW = 28; sM0 = 30; sTmp = 31; sCnt = 32; sWv = 33; sNit = 34; sRole = 35; sGot = 47
    sT = 56
    LDS_GB = R * SLOT
    ST = Stamper(A, 4, stamp, sbase=78, sws=8, swv=33, vtmp=2)
    ST.mark()
    A(f"s_cmp_ge_u32 s2, 256")
    A(f"s_cbranch_scc1 {name}_end")
    A(f"s_load_dwordx2 s[4:5], s[0:1], {KARG['wd']}")
    A(f"s_load_dwordx2 s[6:7], s[0:1], {KARG['out']}")
    A(f"s_load_dwordx2 s[8:9], s[0:1], {KARG['ws']}")
    A(f"v_lshrrev_b32 v1, 6, v0")
    A(f"v_and_b32 v{vLane}, 63, v0")
    A(f"v_readfirstlane_b32 s{sWv}, v1")
    A(f"s_lshr_b32 s{sRole}, s2, 7")
    A(f"s_and_b32 s10, s2, 127")
    A(f"s_and_b32 s11, s10, 7")
    A(f"s_lshr_b32 s12, s10, 3")
    A(f"s_lshr_b32 s13, s11, 1")
    A(f"s_lshl_b32 s13, s13, 2")
    A(f"s_and_b32 s14, s12, 3")
    A(f"s_add_u32 s13, s13, s14")
    A(f"s_and_b32 s14, s11, 1")
    A(f"s_lshl_b32 s14, s14, 2")
    A(f"s_lshr_b32 s15, s12, 2")
    A(f"s_add_u32 s14, s14, s15")
    A(f"s_cmp_eq_u32 s{sRole}, 0")
    A(f"s_cselect_b32 s{sNit}, {NA-1}, {NB-1}")
    A(f"s_cselect_b32 s46, 0, {NA*8}")
    A(f"s_mov_b32 s{sGot}, 0")
    A(f"v_lshrrev_b32 v2, 4, v{vLane}")
    A(f"v_bfe_u32 v3, v{vLane}, 1, 3")
    A(f"v_lshlrev_b32 v5, 11, v2")
    A(f"v_and_b32 v6, 1, v{vLane}")
    A(f"v_lshl_add_u32 v5, v6, 4, v5")
    for e in range(2):
        A(f"v_add_u32 v4, {4*e}, v2")
        A(f"v_xor_b32 v4, v3, v4")
        A(f"v_lshl_add_u32 v{vDma[e]}, v4, 5, v5")
    A(f"v_lshrrev_b32 v22, 4, v{vLane}")
    A(f"v_lshrrev_b32 v23, 1, v22")
    A(f"v_lshlrev_b32 v{vTok}, 10, v23")
    A(f"v_and_b32 v23, 1, v22")
    A(f"v_lshl_add_u32 v{vTok}, v23, 9, v{vTok}")
    A(f"v_and_b32 v25, 15, v{vLane}")
    A(f"v_lshl_add_u32 v{vTok}, v25, 4, v{vTok}")
    A(f"v_bfe_u32 v24, v{vLane}, 2, 2")
    A(f"v_and_b32 v25, 3, v{vLane}")
    A(f"v_lshl_add_u32 v27, v22, 3, v24")
    A(f"v_lshlrev_b32 v26, 8, v27")
    A(f"v_lshl_add_u32 v26, v25, 3, v26")
    A(f"v_lshl_add_u32 v27, v23, 2, v24")
    for T in range(NN):
        A(f"v_xor_b32 v28, {T}, v27")
        A(f"v_lshl_add_u32 v{vRd[T]}, v28, 5, v26")
    A(f"v_and_b32 v24, 15, v{vLane}")
    A(f"v_lshlrev_b32 v{vOut}, 11, v24")
    A(f"v_lshl_add_u32 v{vOut}, v23, 5, v{vOut}")
    A(f"v_lshrrev_b32 v28, 1, v22")
    A(f"v_lshl_add_u32 v{vOut}, v28, 4, v{vOut}")
    A(f"s_waitcnt lgkmcnt(0)")
    ST.mark()
    A(f"s_lshl_b32 s36, s46, 16")
    A(f"s_mul_i32 s37, s{sWv}, {NDMA*4*2048}")
    A(f"s_add_u32 s36, s36, s37")
    A(f"s_lshl_b32 s37, s14, 8")
    A(f"s_add_u32 s36, s36, s37")
    A(f"s_add_u32 s{sWsrd}, s4, s36")
    A(f"s_addc_u32 s{sWsrd+1}, s5, 0")
    A(f"s_sub_u32 s{sWsrd+2}, {3584*2048}, s36")
    A(f"s_mov_b32 s{sWsrd+3}, 0x20000")
    A(f"s_mul_i32 s{sM0}, s{sWv}, {NDMA*1024}")
    A(f"s_lshl_b32 s38, s13, 2")
    A(f"s_add_u32 s38, s38, s{sWv}")
    A(f"s_mul_i32 s36, s38, {224*1024}")
    A(f"s_lshl_b32 s37, s46, 11")
    A(f"s_add_u32 s36, s36, s37")
    A(f"s_add_u32 s36, s36, {WS_ACT}")
    A(f"s_add_u32 s{sTsrd}, s8, s36")
    A(f"s_addc_u32 s{sTsrd+1}, s9, 0")
    A(f"s_sub_u32 s{sTsrd+2}, {224*1024}, s37")
    A(f"s_mov_b32 s{sTsrd+3}, 0x20000")
    A(f"s_lshl_b32 s36, s38, 16")
    A(f"s_lshl_b32 s37, s14, 8")
    A(f"s_add_u32 s36, s36, s37")
    A(f"s_add_u32 s{sOsrd}, s6, s36")
    A(f"s_addc_u32 s{sOsrd+1}, s7, 0")
    A(f"s_sub_u32 s{sOsrd+2}, {2048*2048}, s36")
    A(f"s_mov_b32 s{sOsrd+3}, 0x20000")
    A(f"s_add_u32 s37, s36, {WS_X1}")
    A(f"s_add_u32 s{sXsrd}, s8, s37")
    A(f"s_addc_u32 s{sXsrd+1}, s9, 0")
    A(f"s_sub_u32 s{sXsrd+2}, {2048*2048}, s36")
    A(f"s_mov_b32 s{sXsrd+3}, 0x20000")
    A(f"s_lshl_b32 s36, s10, 16")
    A(f"s_lshl_b32 s37, s{sWv}, 14")
    A(f"s_add_u32 s36, s36, s37")
    A(f"s_add_u32 s36, s36, {WS_PART}")
    A(f"s_add_u32 s48, s8, s36")
    A(f"s_addc_u32 s49, s9, 0")
    A(f"s_lshl_b32 s36, s10, 7")
    A(f"s_add_u32 s36, s36, {WS_FLAG}")
    A(f"s_add_u32 s50, s8, s36")
    A(f"s_addc_u32 s51, s9, 0")
    vG = 12
    A(f"s_lshl_b32 s37, s14, 9")
    A(f"s_and_b32 s36, s{sWv}, 1")
    A(f"s_lshl_b32 s36, s36, 8")
    A(f"s_add_u32 s37, s37, s36")
    A(f"s_add_u32 s37, s37, {WS_MODP2 + 3072*4}")
    A(f"s_add_u32 s44, s8, s37")
    A(f"s_addc_u32 s45, s9, 0")
    A(f"v_lshlrev_b32 v28, 2, v{vLane}")
    A(f"v_add_u32 v29, 16384, v28")
    A(f"v_mov_b32 v10, 0")
    gb_load = [Op(f"global_load_dword v{vG}, v28, s[44:45]", vm=lambda it: ('G', 0)),
               Op(f"global_load_dword v{vG+1}, v29, s[44:45]", vm=lambda it: ('G', 1))]
    gb_proc = [Op(wait_vm=lambda it: [('G', 0), ('G', 1)])]
    for t in [f"v_add_f32 v{vG}, v{vG}, v{vG+1}", f"v_cvt_pk_bf16_f32 v{vG}, v{vG}, v{vG}", f"v_and_b32 v{vG}, 0xffff0000, v{vG}",
              f"v_add_u32 v28, {LDS_GB}, v28", f"v_add_u32 v28, s36, v28", f"ds_write_b32 v28, v{vG}", f"s_waitcnt lgkmcnt(0)"]:
        gb_proc.append(Op(t))
    def dma_ops(tag, slot, k):
        return [Op(f"s_add_u32 m0, s{sM0}, {slot*SLOT + k*1024}"),
                Op(f"s_add_u32 s{sTmp}, s{sW}, {k*4*2048}"),
                Op(f"buffer_load_dwordx4 v{vDma[(k>>1)&1]}, s[{sWsrd}:{sWsrd+3}], s{sTmp} offen lds", vm=tag)]
    def tok_op(ring, ks, j, tag):
        return Op(f"buffer_load_dwordx4 {a(TF[ring][ks][j],4)}, v{vTok}, s[{sTsrd}:{sTsrd+3}], s{sT} offen offset:{ks*2048 + j*256}", vm=tag)
    STB = 64 * 2048
    pro = []
    pro.append(Op(f"s_mov_b32 s{sW}, 0"))
    for st in range(max(R - 1, DT)):
        if st < R - 1:
            for k in range(NDMA): pro += dma_ops((lambda it, st=st, k=k: ('W', st, k)), st, k)
            pro.append(Op(f"s_add_u32 s{sW}, s{sW}, {STB}"))
        if st < DT:
            pro.append(Op(f"s_mov_b32 s{sT}, {st*4096}"))
            for ks in range(SPS):
                if st == DT - 1 and ks == SPS - 1: continue
                for j in range(NT):
                    pro.append(tok_op(st, ks, j, (lambda it, st=st, ks=ks, j=j: ('T', st, ks, j))))
        if st == 0: pro += gb_load
    for r in range(nacc): pro.append(Op(f"v_mov_b32 v{ACC0+r}, 0"))
    pro += gb_proc
    pro.append(Op(f"s_mov_b32 s{sCnt}, 0"))
    pro.append(Op(wait_vm=lambda it: [('W', 0, k) for k in range(NDMA)]))
    pro.append(Op("s_barrier"))
    def rd_ops(buf, slot, ks):
        return [Op(f"ds_read_b64_tr_b16 {v(WF[buf][T]+2*q,2)}, v{vRd[T]} offset:{slot*SLOT + ks*8192 + q*1024}") for T in range(NN) for q in range(2)]
    pro += rd_ops(0, 0, 0)
    def x_loads():
        o = []
        for j in range(NT):
            for P in range(4):
                o.append(f"s_mov_b32 s{sTmp}, {j*16*2048 + P*64}")
                o.append(f"buffer_load_dwordx4 {v(XR+4*(j*4+P),4)}, v{vOut}, s[{sXsrd}:{sXsrd+3}], s{sTmp} offen")
        return o
    def part_loads():
        o = [f"v_lshlrev_b32 v22, 4, v{vLane}"]
        for i in range(16):
            if i in (4, 8, 12): o.append(f"v_add_u32 v22, 4096, v22")
            o.append(f"global_load_dwordx4 {v(PR+4*i,4)}, v22, s[48:49] offset:{(i&3)*1024} sc1")
        return o
    def make_iter(tail):
        body = []
        for st in range(U):
            for ks in range(SPS):
                cur = (st * SPS + ks) & 1
                nst, nks = (st, ks + 1) if ks < SPS - 1 else (st + 1, 0)
                pst, pks = (st, ks - 1) if ks > 0 else (st - 1, SPS - 1)
                last = tail and st == U - 1 and ks == SPS - 1
                tk = []; dm = []; dmend = []; tkinc = []
                if not tail or (st == 0 and ks == 0):
                    pass
                if not tail:
                    tk = [tok_op((pst % DT), pks, j, (lambda it, pst=pst, pks=pks, j=j: ('T', it * U + pst + DT, pks, j))) for j in range(NT)]
                    tkinc = [Op(f"s_add_u32 s{sT}, s{sT}, 4096")] if ks == 0 else []
                    dm = [dma_ops((lambda it, st=st, k=k: ('W', it * U + st + R - 1, k)), (st + R - 1) % R, k) for k in (2 * ks, 2 * ks + 1)]
                    dmend = [Op(f"s_add_u32 s{sW}, s{sW}, {STB}")] if ks == SPS - 1 else []
                else:
                    if st == 0 and ks == 0:
                        tk = [tok_op((pst % DT), pks, j, (lambda it, pst=pst, pks=pks, j=j: ('T', it * U + pst + DT, pks, j))) for j in range(NT)]
                    if st == 0:
                        dm = [dma_ops((lambda it, st=st, k=k: ('W', it * U + st + R - 1, k)), (st + R - 1) % R, k) for k in (2 * ks, 2 * ks + 1)]
                rd = [] if last else rd_ops(cur ^ 1, nst % R, nks)
                head = [Op("s_waitcnt lgkmcnt(0)")]
                if not (tail and st >= 2):
                    head.append(Op(wait_vm=lambda it, st=st, ks=ks: [('T', it * U + st, ks, j) for j in range(NT)]))
                mf = []
                for T in range(NN):
                    for j in range(NT):
                        if nomfma: mf.append(Op("s_nop 0"))
                        else: mf.append(Op(f"v_mfma_f32_16x16x32_bf16 {v(acc(T,j),4)}, {v(WF[cur][T],4)}, {a(TF[st%DT][ks][j],4)}, {v(acc(T,j),4)}"))
                nm = 16
                gaps = [[] for _ in range(nm)]
                if ks == SPS - 1 and not (tail and st == U - 1):
                    if not (tail and st >= 2):
                        gaps[0] += [Op(wait_vm=lambda it, st=st: [('W', it * U + st + 1, k) for k in range(NDMA)])]
                    gaps[0] += [Op("s_barrier")]
                for i, o in enumerate(rd): gaps[min(i * 10 // 16, nm - 1)].append(o)
                if tk: gaps[3] += [tk[0]]; gaps[6] += [tk[1]] + tkinc
                if dm: gaps[10] += dm[0]; gaps[13] += dm[1]
                gaps[nm - 1] += dmend
                if tail and early:
                    if st == 0 and ks == 1:
                        gaps[15] += [Op(f"global_load_dword v11, v10, s[50:51] sc1", vm=lambda it: ('F', 0))]
                    if st == 1 and ks == 1:
                        e = [Op("s_waitcnt vmcnt(0)"), Op("v_readfirstlane_b32 s36, v11"), Op("s_nop 1"),
                             Op(f"s_and_b32 s36, s36, s{sRole}"),
                             Op("s_cmp_eq_u32 s36, 1"), Op(f"s_cbranch_scc0 {name}_noearly"), Op(f"s_mov_b32 s{sGot}, 1")]
                        e += [Op(t) for t in part_loads()] + [Op(t) for t in x_loads()]
                        e += [Op(f"{name}_noearly:")]
                        gaps[15] += e
                elif tail and st == 1 and ks == 1:
                    gaps[15] += [Op("s_waitcnt vmcnt(0)")]
                body += head
                for g in range(nm):
                    body.append(mf[g]); body += gaps[g]
        return body
    body = make_iter(False)
    body.append(Op(f"s_add_u32 s{sCnt}, s{sCnt}, 1"))
    if stamp:
        import os
        op = "s_memtime" if os.environ.get("STAMP_CYC") else "s_memrealtime"
        for i, itn in enumerate((1, 3, 5, 6, 7)):
            body.append(Op(f"s_cmp_eq_u32 s{sCnt}, {itn}"))
            body.append(Op(f"s_cbranch_scc0 {name}_sk{i}"))
            body.append(Op(f"{op} s[{78+2*(3+i)}:{78+2*(3+i)+1}]"))
            body.append(Op(f"{name}_sk{i}:"))
    body.append(Op(f"s_cmp_lt_u32 s{sCnt}, s{sNit}"))
    tail = make_iter(True)
    pl, bl, tl = resolve(pro, body, NB - 1, tail)
    for l in pl: A(l)
    ST.mark()
    A(".p2align 6")
    A.label(f"{name}_loop")
    for l in bl: A(l)
    A(f"s_cbranch_scc1 {name}_loop")
    for l in tl: A(l)
    ST.mark(8)
    A(f"s_cmp_eq_u32 s{sRole}, 0")
    A(f"s_cbranch_scc0 {name}_cons")
    A.nop(8)
    A(f"v_lshlrev_b32 v22, 4, v{vLane}")
    for i in range(16):
        if i in (4, 8, 12): A(f"v_add_u32 v22, 4096, v22")
        A(f"global_store_dwordx4 v22, {v(ACC0+4*i,4)}, s[48:49] offset:{(i&3)*1024} sc1")
    A("s_waitcnt vmcnt(0)")
    A("s_barrier")
    A(f"s_cmp_eq_u32 s{sWv}, 0")
    A(f"s_cbranch_scc0 {name}_fin")
    A("s_mov_b64 exec, 1")
    A("v_mov_b32 v23, 1")
    A("global_store_dword v10, v23, s[50:51] sc1")
    A("s_mov_b64 exec, -1")
    A(f"s_branch {name}_fin")
    A.label(f"{name}_cons")
    A(f"s_cmp_eq_u32 s{sGot}, 1")
    A(f"s_cbranch_scc1 {name}_have")
    for t in x_loads(): A(t)
    A.label(f"{name}_poll")
    A("global_load_dword v23, v10, s[50:51] sc1")
    A("s_waitcnt vmcnt(0)")
    A("v_readfirstlane_b32 s36, v23")
    A.nop(1)
    A("s_cmp_eq_u32 s36, 1")
    A(f"s_cbranch_scc1 {name}_got")
    A("s_sleep 2")
    A(f"s_branch {name}_poll")
    A.label(f"{name}_got")
    for t in part_loads(): A(t)
    A.label(f"{name}_have")
    ST.mark(9)
    A(f"v_lshrrev_b32 v24, 4, v{vLane}")
    A(f"v_and_b32 v25, 1, v24")
    A(f"v_lshlrev_b32 v25, 6, v25")
    A(f"v_lshrrev_b32 v24, 1, v24")
    A(f"v_lshl_add_u32 v25, v24, 5, v25")
    A(f"v_add_u32 v25, {LDS_GB}, v25")
    GB = WF[0][0]
    for P in range(4):
        A(f"ds_read_b128 {v(GB+8*P,4)}, v25 offset:{P*128}")
        A(f"ds_read_b128 {v(GB+8*P+4,4)}, v25 offset:{P*128+16}")
    A("s_waitcnt vmcnt(0)")
    for i in range(16):
        for r in range(0, 4, 2):
            A(f"v_pk_add_f32 {v(ACC0+4*i+r,2)}, {v(ACC0+4*i+r,2)}, {v(PR+4*i+r,2)}")
    for j in range(NT):
        for P in range(4):
            for r in range(4):
                A(f"v_permlane16_swap_b32 v{acc(2*P,j)+r}, v{acc(2*P+1,j)+r}")
    A("s_waitcnt lgkmcnt(0)")
    T0 = 26
    for P in range(4):
        for j in range(NT):
            a0, a1 = acc(2 * P, j), acc(2 * P + 1, j)
            vals = [a0 + r for r in range(4)] + [a1 + r for r in range(4)]
            x = XR + 4 * (j * 4 + P)
            for i in range(4): A(f"v_cvt_pk_bf16_f32 v{T0+i}, v{vals[2*i]}, v{vals[2*i+1]}")
            for i in range(4):
                A(f"v_lshlrev_b32 v{vals[2*i]}, 16, v{T0+i}")
                A(f"v_and_b32 v{vals[2*i+1]}, 0xffff0000, v{T0+i}")
            for i in range(4): A(f"v_pk_mul_f32 {v(vals[2*i],2)}, {v(vals[2*i],2)}, {v(GB+8*P+2*i,2)}")
            for i in range(4): A(f"v_cvt_pk_bf16_f32 v{T0+i}, v{vals[2*i]}, v{vals[2*i+1]}")
            for i in range(4):
                A(f"v_lshlrev_b32 v{vals[2*i]}, 16, v{T0+i}")
                A(f"v_and_b32 v{vals[2*i+1]}, 0xffff0000, v{T0+i}")
            for i in range(4):
                A(f"v_lshlrev_b32 v{T0+i}, 16, v{x+i}")
                A(f"v_and_b32 v{x+i}, 0xffff0000, v{x+i}")
            for i in range(4):
                A(f"v_add_f32 v{vals[2*i]}, v{vals[2*i]}, v{T0+i}")
                A(f"v_add_f32 v{vals[2*i+1]}, v{vals[2*i+1]}, v{x+i}")
            for i in range(4): A(f"v_cvt_pk_bf16_f32 v{x+i}, v{vals[2*i]}, v{vals[2*i+1]}")
            A(f"s_mov_b32 s{sTmp}, {j*16*2048 + P*64}")
            A(f"buffer_store_dwordx4 {v(x,4)}, v{vOut}, s[{sOsrd}:{sOsrd+3}], s{sTmp} offen")
    A.label(f"{name}_fin")
    ST.dump(f"{name}_end")
    if not stamp: A.label(f"{name}_end")
    A("s_endpgm")
    errs = check_hazards(A.lines + bl, name)
    for e in errs: print("HAZARD", e)
    lds = R * SLOT + 1024
    text = kernel_header(name) + A.text()
    desc = kernel_desc(name, nvgpr, 102, accum_offset)
    launch = f"; @launch kernel={name} grid=(256,1,1) block=({NW*64},1,1) lds={lds}"
    return text, desc, launch
```

```python
from asmlib import *
from common import *
from sched import Op, resolve
from stamp import Stamper

def gen_gemm4e(name="gemm4_kernel", SPS=4, R=4, DT=2, nomfma=False, stamp=False):
    NW = 4; NT = 2; NN = 4; TN = 64
    NST = 3584 // (32 * SPS)
    U = R
    assert NST % U == 0 and U % DT == 0
    ROWB = 128; SLOT = 32 * SPS * ROWB
    RPI = 8
    NDMA = (32 * SPS // RPI) // NW
    A = Asm()
    ACC0 = 32
    def acc(T, j): return ACC0 + (T * NT + j) * 4
    nacc = NN * NT * 4
    vr = Regs("v", ACC0 + nacc, 256)
    WF = [[vr.alloc(4, 4) for t in range(NN)] for b in range(2)]
    TF = [[[vr.alloc(4, 4) for j in range(NT)] for ks in range(SPS)] for d in range(DT)]
    XR = vr.alloc(16, 4)
    GB = vr.alloc(16, 4)
    nvgpr = vr.next; accum_offset = (nvgpr + 3) // 4 * 4
    vRd = [2 + t for t in range(NN)]
    vDma = [16, 17]; vTok = 18; vX = 19; vLane = 20; vOut = [10, 11]
    sWsrd = 16; sTsrd = 20; sOsrd = 24; sXsrd = 40
    sW = 28; sM0 = 30; sTmp = 31; sCnt = 32; sWv = 33; sT = 56
    LDS_GB = R * SLOT
    ST = Stamper(A, 4, stamp, sbase=78, sws=8, swv=33, vtmp=2)
    ST.mark()
    A(f"s_cmp_ge_u32 s2, 256")
    A(f"s_cbranch_scc1 {name}_end")
    A(f"s_load_dwordx2 s[4:5], s[0:1], {KARG['wd']}")
    A(f"s_load_dwordx2 s[6:7], s[0:1], {KARG['out']}")
    A(f"s_load_dwordx2 s[8:9], s[0:1], {KARG['ws']}")
    A(f"v_lshrrev_b32 v1, 6, v0")
    A(f"v_and_b32 v{vLane}, 63, v0")
    A(f"v_readfirstlane_b32 s{sWv}, v1")
    A(f"s_and_b32 s11, s2, 7")
    A(f"s_lshr_b32 s12, s2, 3")
    A(f"s_lshr_b32 s13, s11, 1")
    A(f"s_lshl_b32 s13, s13, 2")
    A(f"s_and_b32 s14, s12, 3")
    A(f"s_add_u32 s13, s13, s14")
    A(f"s_and_b32 s14, s11, 1")
    A(f"s_lshl_b32 s14, s14, 3")
    A(f"s_lshr_b32 s15, s12, 2")
    A(f"s_add_u32 s14, s14, s15")
    A(f"v_lshrrev_b32 v2, 3, v{vLane}")
    A(f"v_bfe_u32 v3, v{vLane}, 1, 2")
    A(f"v_bfe_u32 v4, v{vLane}, 4, 1")
    A(f"v_lshlrev_b32 v5, 11, v2")
    A(f"v_and_b32 v6, 1, v{vLane}")
    A(f"v_lshl_add_u32 v5, v6, 4, v5")
    for e in range(2):
        A(f"v_add_u32 v6, {2*e}, v4")
        A(f"v_xor_b32 v6, v3, v6")
        A(f"v_lshl_add_u32 v{vDma[e]}, v6, 5, v5")
    A(f"v_lshrrev_b32 v22, 4, v{vLane}")
    A(f"v_lshrrev_b32 v23, 1, v22")
    A(f"v_lshlrev_b32 v{vTok}, 10, v23")
    A(f"v_and_b32 v23, 1, v22")
    A(f"v_lshl_add_u32 v{vTok}, v23, 9, v{vTok}")
    A(f"v_and_b32 v29, 15, v{vLane}")
    A(f"v_lshl_add_u32 v{vTok}, v29, 4, v{vTok}")
    A(f"v_bfe_u32 v24, v{vLane}, 2, 2")
    A(f"v_and_b32 v25, 3, v{vLane}")
    A(f"v_lshl_add_u32 v27, v22, 3, v24")
    A(f"v_lshlrev_b32 v26, 7, v27")
    A(f"v_lshl_add_u32 v26, v25, 3, v26")
    A(f"v_lshrrev_b32 v27, 1, v24")
    A(f"v_lshl_add_u32 v27, v23, 1, v27")
    for T in range(NN):
        A(f"v_xor_b32 v28, {T}, v27")
        A(f"v_lshl_add_u32 v{vRd[T]}, v28, 5, v26")
    A(f"v_lshlrev_b32 v30, 5, v23")
    A(f"v_lshrrev_b32 v28, 1, v22")
    A(f"v_lshl_add_u32 v30, v28, 4, v30")
    A(f"v_lshl_add_u32 v{vX}, v29, 11, v30")
    A(f"s_lshl_b32 s35, s13, 7")
    A(f"s_lshl_b32 s36, s{sWv}, 5")
    A(f"s_add_u32 s35, s35, s36")
    for j in range(NT):
        A(f"v_add_u32 v24, s35, v29")
        if j: A(f"v_add_u32 v24, 16, v24")
        A(f"v_lshrrev_b32 v25, 3, v24")
        A(f"v_lshlrev_b32 v25, 2, v25")
        A(f"v_and_b32 v26, 3, v24")
        A(f"v_add_u32 v25, v25, v26")
        A(f"v_sub_u32 v26, 2048, v25")
        A(f"v_and_b32 v27, 4, v24")
        A(f"v_cmp_ne_u32 vcc, 0, v27")
        A.nop(2)
        A(f"v_cndmask_b32 v25, v25, v26, vcc")
        A(f"v_mov_b32 v26, 1024")
        A(f"v_cmp_eq_u32 vcc, 4, v24")
        A.nop(2)
        A(f"v_cndmask_b32 v25, v25, v26, vcc")
        A(f"v_lshl_add_u32 v{vOut[j]}, v25, 11, v30")
    A(f"s_waitcnt lgkmcnt(0)")
    ST.mark()
    A(f"s_mul_i32 s36, s{sWv}, {NDMA*RPI*2048}")
    A(f"s_lshl_b32 s37, s14, 7")
    A(f"s_add_u32 s36, s36, s37")
    A(f"s_add_u32 s{sWsrd}, s4, s36")
    A(f"s_addc_u32 s{sWsrd+1}, s5, 0")
    A(f"s_sub_u32 s{sWsrd+2}, {3584*2048}, s36")
    A(f"s_mov_b32 s{sWsrd+3}, 0x20000")
    A(f"s_mul_i32 s{sM0}, s{sWv}, {NDMA*1024}")
    A(f"s_lshl_b32 s38, s13, 2")
    A(f"s_add_u32 s38, s38, s{sWv}")
    A(f"s_mul_i32 s36, s38, {224*1024}")
    A(f"s_add_u32 s36, s36, {WS_ACT}")
    A(f"s_add_u32 s{sTsrd}, s8, s36")
    A(f"s_addc_u32 s{sTsrd+1}, s9, 0")
    A(f"s_mov_b32 s{sTsrd+2}, {224*1024}")
    A(f"s_mov_b32 s{sTsrd+3}, 0x20000")
    A(f"s_lshl_b32 s37, s14, 7")
    A(f"s_add_u32 s{sOsrd}, s6, s37")
    A(f"s_addc_u32 s{sOsrd+1}, s7, 0")
    A(f"s_sub_u32 s{sOsrd+2}, {2048*2048}, s37")
    A(f"s_mov_b32 s{sOsrd+3}, 0x20000")
    A(f"s_lshl_b32 s36, s35, 11")
    A(f"s_add_u32 s36, s36, s37")
    A(f"s_add_u32 s37, s36, {WS_X1}")
    A(f"s_add_u32 s{sXsrd}, s8, s37")
    A(f"s_addc_u32 s{sXsrd+1}, s9, 0")
    A(f"s_sub_u32 s{sXsrd+2}, {2048*2048}, s36")
    A(f"s_mov_b32 s{sXsrd+3}, 0x20000")
    vG = 12
    A(f"s_lshl_b32 s37, s14, 8")
    A(f"s_add_u32 s37, s37, {WS_MODP2 + 3072*4}")
    A(f"s_add_u32 s44, s8, s37")
    A(f"s_addc_u32 s45, s9, 0")
    A(f"v_lshlrev_b32 v28, 2, v{vLane}")
    A(f"v_add_u32 v29, 16384, v28")
    gb_load = [Op(f"global_load_dword v{vG}, v28, s[44:45]", vm=lambda it: ('G', 0)),
               Op(f"global_load_dword v{vG+1}, v29, s[44:45]", vm=lambda it: ('G', 1))]
    gb_proc = [Op(wait_vm=lambda it: [('G', 0), ('G', 1)])]
    for t in [f"v_add_f32 v{vG}, v{vG}, v{vG+1}", f"v_cvt_pk_bf16_f32 v{vG}, v{vG}, v{vG}", f"v_and_b32 v{vG}, 0xffff0000, v{vG}",
              f"v_add_u32 v28, {LDS_GB}, v28", f"ds_write_b32 v28, v{vG}", f"s_waitcnt lgkmcnt(0)"]:
        gb_proc.append(Op(t))
    x_load = []
    for j in range(NT):
        for P in range(2):
            x_load.append(Op(f"s_mov_b32 s{sTmp}, {j*16*2048 + P*64}"))
            x_load.append(Op(f"buffer_load_dwordx4 {v(XR+4*(j*2+P),4)}, v{vX}, s[{sXsrd}:{sXsrd+3}], s{sTmp} offen", vm=lambda it, j=j, P=P: ('X', j, P)))
    def dma_ops(tag, slot, k):
        return [Op(f"s_add_u32 m0, s{sM0}, {slot*SLOT + k*1024}"),
                Op(f"s_add_u32 s{sTmp}, s{sW}, {k*RPI*2048}"),
                Op(f"buffer_load_dwordx4 v{vDma[k&1]}, s[{sWsrd}:{sWsrd+3}], s{sTmp} offen lds", vm=tag)]
    assert (NDMA % 2) == 0
    def tok_op(ring, ks, j, tag):
        off = ks * 2048 + j * 256
        assert off < 4096 * 2
        if off < 4096:
            return Op(f"buffer_load_dwordx4 {v(TF[ring][ks][j],4)}, v{vTok}, s[{sTsrd}:{sTsrd+3}], s{sT} offen offset:{off}", vm=tag)
        return Op(f"buffer_load_dwordx4 {v(TF[ring][ks][j],4)}, v{vTok2}, s[{sTsrd}:{sTsrd+3}], s{sT} offen offset:{off-4096}", vm=tag)
    vTok2 = 14
    A(f"v_add_u32 v{vTok2}, 4096, v{vTok}")
    STB = 32 * SPS * 2048
    TSTEP = SPS * 2048
    pro = []
    pro.append(Op(f"s_mov_b32 s{sW}, 0"))
    for st in range(R - 1):
        for k in range(NDMA): pro += dma_ops((lambda it, st=st, k=k: ('W', st, k)), st, k)
        if st < DT:
            pro.append(Op(f"s_mov_b32 s{sT}, {st*TSTEP}"))
            for ks in range(SPS):
                if st == DT - 1 and ks == SPS - 1: continue
                for j in range(NT):
                    pro.append(tok_op(st, ks, j, (lambda it, st=st, ks=ks, j=j: ('T', st, ks, j))))
        if st == 0: pro += gb_load
        pro.append(Op(f"s_add_u32 s{sW}, s{sW}, {STB}"))
    pro += x_load
    for r in range(nacc): pro.append(Op(f"v_mov_b32 v{ACC0+r}, 0"))
    pro += gb_proc
    for P in range(2): pass
    pro.append(Op(f"s_mov_b32 s{sCnt}, 0"))
    pro.append(Op(wait_vm=lambda it: [('W', 0, k) for k in range(NDMA)]))
    pro.append(Op("s_barrier"))
    def rd_ops(buf, slot, ks):
        return [Op(f"ds_read_b64_tr_b16 {v(WF[buf][T]+2*q,2)}, v{vRd[T]} offset:{slot*SLOT + ks*32*ROWB + q*4*ROWB}") for T in range(NN) for q in range(2)]
    pro += rd_ops(0, 0, 0)
    body = []
    for st in range(U):
        for ks in range(SPS):
            cur = (st * SPS + ks) & 1
            nst, nks = (st, ks + 1) if ks < SPS - 1 else (st + 1, 0)
            pst, pks = (st, ks - 1) if ks > 0 else (st - 1, SPS - 1)
            tk = [tok_op((pst % DT), pks, j, (lambda it, pst=pst, pks=pks, j=j: ('T', it * U + pst + DT, pks, j))) for j in range(NT)]
            tkinc = [Op(f"s_add_u32 s{sT}, s{sT}, {TSTEP}")] if ks == 0 else []
            dm = [dma_ops((lambda it, st=st, k=k: ('W', it * U + st + R - 1, k)), (st + R - 1) % R, k) for k in range(NDMA) if k * SPS // NDMA == ks]
            dmend = [Op(f"s_add_u32 s{sW}, s{sW}, {STB}")] if ks == SPS - 1 else []
            rd = rd_ops(cur ^ 1, nst % R, nks)
            head = [Op("s_waitcnt lgkmcnt(0)"), Op(wait_vm=lambda it, st=st, ks=ks: [('T', it * U + st, ks, j) for j in range(NT)])]
            mf = []
            for T in range(NN):
                for j in range(NT):
                    if nomfma: mf.append(Op("s_nop 0"))
                    else: mf.append(Op(f"v_mfma_f32_16x16x32_bf16 {v(acc(T,j),4)}, {v(WF[cur][T],4)}, {v(TF[st%DT][ks][j],4)}, {v(acc(T,j),4)}"))
            nm = len(mf)
            gaps = [[] for _ in range(nm)]
            if ks == SPS - 1:
                gaps[0] += [Op(wait_vm=lambda it, st=st: [('W', it * U + st + 1, k) for k in range(NDMA)]), Op("s_barrier")]
            for i, o in enumerate(rd): gaps[min(i // 2, nm - 1)].append(o)
            gaps[4] += [tk[0]]; gaps[5] += [tk[1]] + tkinc
            for i, d in enumerate(dm): gaps[min(6 + i, nm - 1)] += d
            gaps[nm - 1] += dmend
            body += head
            for g in range(nm):
                body.append(mf[g]); body += gaps[g]
    body.append(Op(f"s_add_u32 s{sCnt}, s{sCnt}, 1"))
    body.append(Op(f"s_cmp_lt_u32 s{sCnt}, {NST//U}"))
    pl, bl, _ = resolve(pro, body, NST // U)
    for l in pl: A(l)
    ST.mark()
    A(".p2align 6")
    A.label(f"{name}_loop")
    for l in bl: A(l)
    A(f"s_cbranch_scc1 {name}_loop")
    ST.mark(8)
    A(f"v_lshrrev_b32 v22, 4, v{vLane}")
    A(f"v_and_b32 v23, 1, v22")
    A(f"v_lshlrev_b32 v23, 6, v23")
    A(f"v_lshrrev_b32 v22, 1, v22")
    A(f"v_lshl_add_u32 v23, v22, 5, v23")
    A(f"v_add_u32 v23, {LDS_GB}, v23")
    for P in range(2):
        A(f"ds_read_b128 {v(GB+8*P,4)}, v23 offset:{P*128}")
        A(f"ds_read_b128 {v(GB+8*P+4,4)}, v23 offset:{P*128+16}")
    A.nop(2)
    for j in range(NT):
        for P in range(2):
            for r in range(4):
                A(f"v_permlane16_swap_b32 v{acc(2*P,j)+r}, v{acc(2*P+1,j)+r}")
    A("s_waitcnt lgkmcnt(0)")
    T0 = 24
    for j in range(NT):
        for P in range(2):
            a0, a1 = acc(2 * P, j), acc(2 * P + 1, j)
            vals = [a0 + r for r in range(4)] + [a1 + r for r in range(4)]
            x = XR + 4 * (j * 2 + P)
            for i in range(4):
                A(f"v_lshlrev_b32 v{T0+i}, 16, v{x+i}")
                A(f"v_and_b32 v{x+i}, 0xffff0000, v{x+i}")
            for i in range(4):
                A(f"v_fma_f32 v{vals[2*i]}, v{vals[2*i]}, v{GB+8*P+2*i}, v{T0+i}")
                A(f"v_fma_f32 v{vals[2*i+1]}, v{vals[2*i+1]}, v{GB+8*P+2*i+1}, v{x+i}")
            for i in range(4): A(f"v_cvt_pk_bf16_f32 v{x+i}, v{vals[2*i]}, v{vals[2*i+1]}")
            A(f"buffer_store_dwordx4 {v(x,4)}, v{vOut[j]}, s[{sOsrd}:{sOsrd+3}], 0 offen offset:{P*64}")
    ST.dump(f"{name}_end")
    if not stamp: A.label(f"{name}_end")
    A("s_endpgm")
    errs = check_hazards(A.lines + bl, name)
    for e in errs: print("HAZARD", e)
    lds = R * SLOT + 512
    text = kernel_header(name) + A.text()
    desc = kernel_desc(name, nvgpr, 102, accum_offset)
    launch = f"; @launch kernel={name} grid=(256,1,1) block=({NW*64},1,1) lds={lds}"
    return text, desc, launch
```

```python
from asmlib import *
from common import *
from k_small import *

def gemv64x128(A, name, sWs, sC, sWm, sWv, s_cb, s_ks, colbase, wsoff, LDS_G):
    vW = 16; vC = 24; vAcc = 32
    LDS_G2 = LDS_G + 16384
    A(f"v_and_b32 v2, 63, v0")
    A(f"v_lshrrev_b32 v4, 3, v0")
    A(f"s_lshl_b32 s20, s{s_ks}, 7")
    A(f"v_add_u32 v4, s20, v4")
    A(f"v_lshlrev_b32 v5, 1, v4")
    A(f"v_mul_u32_u24 v4, 12288, v4")
    A(f"v_and_b32 v6, 7, v0")
    A(f"v_lshl_add_u32 v4, v6, 4, v4")
    A(f"s_lshl_b32 s20, s{s_cb}, 7")
    A(f"s_add_u32 s20, s20, {colbase*2}")
    A(f"v_add_u32 v4, s20, v4")
    A(f"v_add_u32 v7, {64*12288}, v4")
    A("s_waitcnt lgkmcnt(0)")
    A(f"global_load_dwordx4 {v(vW,4)}, v4, s[{sWm}:{sWm+1}]")
    A(f"global_load_dwordx4 {v(vW+4,4)}, v7, s[{sWm}:{sWm+1}]")
    A(f"global_load_ushort v{vC}, v5, s[{sC}:{sC+1}]")
    A(f"global_load_ushort v{vC+1}, v5, s[{sC}:{sC+1}] offset:128")
    return dict(vW=vW, vC=vC, vAcc=vAcc, LDS_G=LDS_G, LDS_G2=LDS_G2)

def gemv64x128_fin(A, name, ctx, sWs, sWv, s_cb, s_ks, wsoff):
    vW, vC, vAcc, LDS_G, LDS_G2 = ctx['vW'], ctx['vC'], ctx['vAcc'], ctx['LDS_G'], ctx['LDS_G2']
    for i in range(2): silu_bf16(A, vC + i, 5)
    for i in range(2):
        for d in range(4):
            w = vW + 4 * i + d
            A(f"v_lshlrev_b32 v5, 16, v{w}")
            A(f"v_and_b32 v{w}, 0xffff0000, v{w}")
            op = "v_mul_f32" if i == 0 else "v_fmac_f32"
            A(f"{op} v{vAcc+2*d}, v{vC+i}, v5")
            A(f"{op} v{vAcc+2*d+1}, v{vC+i}, v{w}")
    A(f"v_lshlrev_b32 v5, 5, v0")
    A(f"v_add_u32 v5, {LDS_G}, v5")
    A(f"ds_write_b128 v5, {v(vAcc,4)}")
    A(f"ds_write_b128 v5, {v(vAcc+4,4)} offset:16")
    A(f"s_lshl_b32 s20, s{sWv}, 11")
    A(f"s_add_u32 s20, s20, {LDS_G}")
    A(f"v_lshlrev_b32 v5, 2, v2")
    A(f"v_add_u32 v5, s20, v5")
    A("s_waitcnt lgkmcnt(0)")
    for g in range(8): A(f"ds_read_b32 v{vAcc+g}, v5 offset:{g*256}")
    A("s_waitcnt lgkmcnt(0)")
    for (x, y) in ((0, 1), (2, 3), (4, 5), (6, 7), (0, 2), (4, 6), (0, 4)):
        A(f"v_add_f32 v{vAcc+x}, v{vAcc+x}, v{vAcc+y}")
    A(f"v_lshlrev_b32 v5, 2, v0")
    A(f"v_add_u32 v5, {LDS_G2}, v5")
    A(f"ds_write_b32 v5, v{vAcc}")
    A("s_waitcnt lgkmcnt(0)")
    A("s_barrier")
    A(f"s_cmp_eq_u32 s{sWv}, 0")
    A(f"s_cbranch_scc0 {name}_fin")
    for g in range(8): A(f"ds_read_b32 v{vAcc+g}, v5 offset:{g*256}")
    A("s_waitcnt lgkmcnt(0)")
    for (x, y) in ((0, 1), (2, 3), (4, 5), (6, 7), (0, 2), (4, 6), (0, 4)):
        A(f"v_add_f32 v{vAcc+x}, v{vAcc+x}, v{vAcc+y}")
    A(f"s_lshl_b32 s20, s{s_cb}, 11")
    A(f"s_lshl_b32 s21, s{s_ks}, 2")
    A(f"s_add_u32 s20, s20, s21")
    A(f"s_add_u32 s20, s20, {wsoff}")
    A(f"v_lshlrev_b32 v5, 5, v2")
    A(f"v_add_u32 v5, s20, v5")
    A(f"global_store_dword v5, v{vAcc}, s[{sWs}:{sWs+1}]")

def prefetch_gateup(A, sG, s_id, sWv, part, nparts, vt, vdum, stride=64, nwaves=8):
    nl = 896 // stride
    lpr = 16 if stride == 64 else 8
    rpi = 64 // lpr
    rows = 32 // nparts
    wpm = nwaves // 2
    rpw = rows // wpm
    ninstr = (rpw + rpi - 1) // rpi
    A(f"s_and_b32 s40, s{s_id}, 7")
    A(f"s_mul_i32 s40, s40, 896")
    A(f"s_lshr_b32 s41, s{s_id}, 3")
    A(f"s_lshl_b32 s41, s41, 5")
    A(f"s_and_b32 s42, s{sWv}, {wpm-1}")
    A(f"s_mul_i32 s42, s42, {rpw}")
    A(f"s_add_u32 s41, s41, s42")
    A(f"s_add_u32 s41, s41, {part*rows}")
    A(f"s_mul_i32 s41, s41, 7168")
    A(f"s_add_u32 s40, s40, s41")
    A(f"s_bitcmp1_b32 s{sWv}, {2 if nwaves == 8 else 1}")
    A(f"s_cselect_b32 s42, s{sG+2}, s{sG}")
    A(f"s_cselect_b32 s43, s{sG+3}, s{sG+1}")
    A(f"v_and_b32 v{vt+1}, 63, v0")
    A(f"v_lshrrev_b32 v{vt}, {4 if lpr == 16 else 3}, v{vt+1}")
    if rpw < rpi: A(f"v_min_u32 v{vt}, {rpw-1}, v{vt}")
    A(f"v_mul_u32_u24 v{vt}, 7168, v{vt}")
    A(f"v_and_b32 v{vt+1}, {lpr-1}, v{vt+1}")
    A(f"v_min_u32 v{vt+1}, {nl-1}, v{vt+1}")
    A(f"v_lshl_add_u32 v{vt}, v{vt+1}, {6 if stride == 64 else 7}, v{vt}")
    A(f"v_add_u32 v{vt}, s40, v{vt}")
    for i in range(ninstr):
        A(f"global_load_dword v{vdum}, v{vt}, s[42:43]")
        if i < ninstr - 1: A(f"v_add_u32 v{vt}, {rpi*7168}, v{vt}")
    return ninstr

def prefetch_linear(A, sB, s_id, total, nwg, vt, vdum, stride=64, nthreads=512):
    chunk = total // nwg
    assert chunk * nwg == total
    per = nthreads * stride
    n = (chunk + per - 1) // per
    A(f"s_mul_i32 s40, s{s_id}, {chunk}")
    A(f"v_lshlrev_b32 v{vt}, {6 if stride == 64 else 7}, v0")
    for i in range(n):
        A(f"v_min_u32 v{vt+1}, {chunk-4-i*per if chunk-i*per < per else 0x7fffffff}, v{vt}")
        A(f"v_add_u32 v{vt+1}, s40, v{vt+1}")
        if i: A(f"v_add_u32 v{vt+1}, {i*per}, v{vt+1}")
        A(f"global_load_dword v{vdum}, v{vt+1}, s[{sB}:{sB+1}]")
    return n
```

```python
from asmlib import *
from common import *
from k_small import *
from stamp import Stamper
from k_gemv import *

def allreduce2(A, r0, r1, t0, t1):
    allreduce64(A, [r0, r1], [t0, t1])

def ln_stats(A, F, n, S, T, sC, inv_n):
    A(f"v_pk_add_f32 {v(S,2)}, {v(F,2)}, {v(F+2,2)}")
    A(f"v_pk_mul_f32 {v(S+2,2)}, {v(F,2)}, {v(F,2)}")
    A(f"v_pk_fma_f32 {v(S+2,2)}, {v(F+2,2)}, {v(F+2,2)}, {v(S+2,2)}")
    for i in range(4, n, 2):
        A(f"v_pk_add_f32 {v(S,2)}, {v(S,2)}, {v(F+i,2)}")
        A(f"v_pk_fma_f32 {v(S+2,2)}, {v(F+i,2)}, {v(F+i,2)}, {v(S+2,2)}")
    A(f"v_add_f32 v{S}, v{S}, v{S+1}")
    A(f"v_add_f32 v{S+1}, v{S+2}, v{S+3}")
    A.nop(1)
    allreduce64(A, [S, S + 1], [S + 2, S + 3])
    A(f"v_mul_f32 v{S}, {inv_n}, v{S}")
    A(f"v_mul_f32 v{S+1}, {inv_n}, v{S+1}")
    A(f"v_fma_f32 v{S+1}, -v{S}, v{S}, v{S+1}")
    A(f"v_max_f32 v{S+1}, 0, v{S+1}")
    A(f"v_add_f32 v{S}, s{sC}, v{S}")
    round_bf16(A, S + 1, S + 1)
    round_bf16(A, S, S)
    A(f"v_add_f32 v{S+1}, {hex(f32_bits(1e-5))}, v{S+1}")
    A(f"v_sub_f32 v{S}, s{sC}, v{S}")
    round_bf16(A, S + 1, S + 1)
    A(f"v_sqrt_f32 v{S+1}, v{S+1}")
    A(f"v_mov_b32 v{S+2}, v{S}")
    round_bf16(A, S + 1, S + 1) if False else None
    A(f"v_cvt_pk_bf16_f32 v{S+1}, v{S+1}, v{S+1}")
    A(f"v_and_b32 v{S+1}, 0xffff0000, v{S+1}")
    A(f"v_rcp_f32 v{S+4}, v{S+1}")
    A(f"v_mov_b32 v{S+3}, v{S}")
    A(f"v_mov_b32 v{S+5}, v{S+4}")
    return S + 2, S + 4

def gen_l1(name="l1_kernel", stamp=False, code_range=None, pf_stride=64):
    A = Asm()
    ST = Stamper(A, 0, stamp, vtmp=60)
    ST.mark()
    vX = 8; vF = 16; vS = 32; vP = 40
    sX, sC, sWm, sWs = 4, 8, 10, 6
    sWv = 12
    PITCH = 2080
    LDS_X = 0
    lds = 18432 + 256
    A(f"s_cmp_ge_u32 s2, 512")
    A(f"s_cbranch_scc1 {name}_end")
    A(f"s_load_dwordx2 s[{sX}:{sX+1}], s[0:1], {KARG['x']}")
    A(f"s_load_dwordx4 s[{sC}:{sC+3}], s[0:1], {KARG['c']}")
    A(f"s_load_dwordx2 s[{sWs}:{sWs+1}], s[0:1], {KARG['ws']}")
    A(f"v_lshrrev_b32 v1, 6, v0")
    A(f"v_and_b32 v2, 63, v0")
    A(f"v_readfirstlane_b32 s{sWv}, v1")
    A(f"s_and_b32 s13, s2, 7")
    A(f"s_cmp_ge_u32 s2, 256")
    A(f"s_cbranch_scc1 {name}_gemv")
    A(f"s_lshr_b32 s14, s2, 3")
    A(f"s_and_b32 s15, s14, 7")
    A(f"s_lshl_b32 s16, s13, 3")
    A(f"s_add_u32 s15, s15, s16")
    A(f"s_lshr_b32 s16, s14, 3")
    A(f"s_lshl_b32 s17, s16, 3")
    A(f"s_add_u32 s17, s17, s{sWv}")
    A(f"s_lshl_b32 s17, s17, 6")
    A(f"s_add_u32 s17, s17, s15")
    A(f"s_lshl_b32 s17, s17, 11")
    A(f"v_lshlrev_b32 v3, 4, v2")
    A(f"v_add_u32 v4, s17, v3")
    A("s_waitcnt lgkmcnt(0)")
    ST.mark()
    A(f"global_load_dwordx4 {v(vX,4)}, v4, s[{sX}:{sX+1}]")
    A(f"global_load_dwordx4 {v(vX+4,4)}, v4, s[{sX}:{sX+1}] offset:1024")
    A(f"s_mul_i32 s18, s{sWv}, {PITCH}")
    A(f"v_add_u32 v5, s18, v3")
    A(f"v_bfe_u32 v6, v2, 4, 1")
    A(f"v_lshlrev_b32 v6, 1, v6")
    A(f"v_lshrrev_b32 v7, 5, v2")
    A(f"v_add_u32 v6, v6, v7")
    A(f"v_bfe_u32 v7, v2, 2, 2")
    A(f"v_mul_u32_u24 v7, {PITCH}, v7")
    A(f"v_lshl_add_u32 v7, v6, 6, v7")
    A(f"v_and_b32 v3, 3, v2")
    A(f"v_lshl_add_u32 v7, v3, 3, v7")
    A(f"s_lshl_b32 s18, s{sWv}, 8")
    A(f"v_add_u32 v7, s18, v7")
    A(f"v_and_b32 v3, 15, v2")
    A(f"v_lshlrev_b32 v3, 14, v3")
    A(f"v_lshl_add_u32 v3, v6, 4, v3")
    A(f"s_lshl_b32 s18, s{sWv}, 19")
    A(f"s_lshr_b32 s20, s15, 3"); A(f"s_lshl_b32 s20, s20, 11"); A(f"s_add_u32 s18, s18, s20")
    A(f"s_lshr_b32 s20, s16, 1"); A(f"s_lshl_b32 s20, s20, 10"); A(f"s_add_u32 s18, s18, s20")
    A(f"s_and_b32 s20, s16, 1"); A(f"s_lshl_b32 s20, s20, 9"); A(f"s_add_u32 s18, s18, s20")
    A(f"s_and_b32 s20, s15, 7"); A(f"s_lshl_b32 s20, s20, 6"); A(f"s_add_u32 s18, s18, s20")
    A(f"s_add_u32 s18, s18, {WS_XNF}")
    A(f"v_add_u32 v3, s18, v3")
    A("s_waitcnt vmcnt(0)")
    ST.mark()
    A(f"v_lshlrev_b32 v{vF}, 16, v{vX}")
    A.nop(1)
    A(f"v_readfirstlane_b32 s21, v{vF}")
    for i in range(8):
        if i > 0: A(f"v_lshlrev_b32 v{vF+2*i}, 16, v{vX+i}")
        A(f"v_and_b32 v{vF+2*i+1}, 0xffff0000, v{vX+i}")
    for i in range(16): A(f"v_subrev_f32 v{vF+i}, s21, v{vF+i}")
    ST.mark()
    cm, rinv = ln_stats(A, vF, 16, vS, None, 21, hex(f32_bits(1.0 / 1024)))
    ST.mark()
    for i in range(8): A(f"v_pk_add_f32 {v(vF+2*i,2)}, {v(vF+2*i,2)}, {v(cm,2)}")
    for i in range(8): A(f"v_cvt_pk_bf16_f32 v{vP+i}, v{vF+2*i}, v{vF+2*i+1}")
    for i in range(8):
        A(f"v_lshlrev_b32 v{vF+2*i}, 16, v{vP+i}")
        A(f"v_and_b32 v{vF+2*i+1}, 0xffff0000, v{vP+i}")
    for i in range(8): A(f"v_pk_mul_f32 {v(vF+2*i,2)}, {v(vF+2*i,2)}, {v(rinv,2)}")
    for i in range(8): A(f"v_cvt_pk_bf16_f32 v{vP+i}, v{vF+2*i}, v{vF+2*i+1}")
    ST.mark()
    A(f"ds_write_b128 v5, {v(vP,4)} offset:{LDS_X}")
    A(f"ds_write_b128 v5, {v(vP+4,4)} offset:{LDS_X+1024}")
    A("s_waitcnt lgkmcnt(0)")
    ST.mark()
    A("s_barrier")
    ST.mark()
    for half in range(2):
        for q in range(2):
            A(f"ds_read_b64_tr_b16 {v(vF+4*half+2*q,2)}, v7 offset:{LDS_X + q*4*PITCH + half*32}")
    for half in range(2):
        A(f"s_waitcnt lgkmcnt({2-2*half})")
        A(f"global_store_dwordx4 v3, {v(vF+4*half,4)}, s[{sWs}:{sWs+1}]")
        if half == 0: A(f"v_add_u32 v3, {16*16384}, v3")
    ST.mark()
    A(f"s_branch {name}_fin")
    A.label(f"{name}_gemv")
    A(f"s_and_b32 s18, s2, 31")
    A(f"s_lshr_b32 s19, s2, 5")
    A(f"s_and_b32 s19, s19, 7")
    ctx = gemv64x128(A, name, sWs, sC, sWm, sWv, 18, 19, 0, WS_MODP1, 0)
    if code_range is not None:
        lo, hi = code_range
        A(f"s_getpc_b64 s[22:23]")
        A.label(f"{name}_pc")
        A(f"s_add_u32 s22, s22, {lo}-{name}_pc")
        A(f"s_addc_u32 s23, s23, 0")
        A(f"s_lshr_b32 s20, s2, 3")
        A(f"s_and_b32 s20, s20, 31")
        A(f"s_lshl_b32 s20, s20, 9")
        A(f"v_add_u32 v8, s20, v0")
        A(f"v_lshlrev_b32 v8, 6, v8")
        A(f"v_mov_b32 v9, {hi}-{lo}")
        A(f"v_cmp_lt_u32 vcc, v8, v9")
        A(f"s_and_saveexec_b64 s[24:25], vcc")
        A(f"s_cbranch_execz {name}_nopf")
        A(f"global_load_dword v10, v8, s[22:23]")
        A.label(f"{name}_nopf")
        A(f"s_mov_b64 exec, s[24:25]")
    A("s_waitcnt vmcnt(0)")
    gemv64x128_fin(A, name, ctx, sWs, sWv, 18, 19, WS_MODP1)
    A.label(f"{name}_fin")
    ST.dump(f"{name}_end")
    if not stamp: A.label(f"{name}_end")
    A("s_endpgm")
    for e in check_hazards(A.lines, name): print("HAZARD", e)
    return (kernel_header(name) + A.text(), kernel_desc(name, 64, 96, 64),
            f"; @launch kernel={name} grid=(512,1,1) block=(512,1,1) lds={lds}")
```

```python
from asmlib import *
from common import *
import os
SF = os.environ.get('SF_L2', '')
from k_small import *
from k_gemv import *
from stamp import Stamper

def table_dma(A, sTab, sWv, npieces, nwaves, ldsbase, vLane16, vt):
    n = (npieces + nwaves - 1) // nwaves
    for i in range(n):
        A(f"s_add_u32 s44, s{sWv}, {i*nwaves}")
        A(f"s_min_u32 s44, s44, {npieces-1}")
        A(f"s_lshl_b32 s44, s44, 10")
        A(f"s_add_u32 m0, s44, {ldsbase}")
        A(f"v_add_u32 v{vt}, s44, v{vLane16}")
        A(f"global_load_lds_dwordx4 v{vt}, s[{sTab}:{sTab+1}]")
    return n

def gen_l2(name="l2_kernel", stamp=False, pf_parts=(0, 2), pf_stride=64):
    A = Asm()
    ST = Stamper(A, 1, stamp, vtmp=16)
    ST.mark()
    vX = 8; vW1 = 16; vW3 = 32; vD1 = 64; vTw = 96; vDA = 96; vD3 = 64; vD4 = 80
    vM = 0; vK = 16
    vG = 16; vC = 32; vAcc = 36
    sWs, sC, sWm = 6, 8, 10
    sWv = 12
    PITCH = 272
    LDS_B = 0
    LDS_TAB = 34816
    LDS_G = 0
    LDS_G2 = LDS_G + 16384
    lds = LDS_TAB + 20480
    A(f"s_cmp_ge_u32 s2, 512")
    A(f"s_cbranch_scc1 {name}_end")
    A(f"s_load_dwordx4 s[{sC}:{sC+3}], s[0:1], {KARG['c']}")
    A(f"s_load_dwordx2 s[{sWs}:{sWs+1}], s[0:1], {KARG['ws']}")
    A(f"s_load_dwordx4 s[28:31], s[0:1], {KARG['wg']}")
    A(f"v_lshrrev_b32 v1, 6, v0")
    A(f"v_and_b32 v2, 63, v0")
    A(f"v_readfirstlane_b32 s{sWv}, v1")
    A(f"s_and_b32 s13, s2, 7")
    A(f"s_lshr_b32 s14, s2, 3")
    A(f"v_lshlrev_b32 v3, 4, v2")
    A(f"s_cmp_ge_u32 s2, 256")
    A(f"s_cbranch_scc1 {name}_gemv")
    A(f"s_getpc_b64 s[4:5]")
    A.label(f"{name}_pc")
    A(f"s_add_u32 s4, s4, tab_W1-{name}_pc")
    A(f"s_addc_u32 s5, s5, 0")
    nt = table_dma(A, 4, sWv, 20, 8, LDS_TAB, 3, 4)
    A(f"s_and_b32 s15, s{sWv}, 1")
    A(f"s_lshl_b32 s16, s13, 5")
    A(f"s_add_u32 s16, s16, s14")
    A(f"s_lshl_b32 s16, s16, 14")
    A(f"s_lshl_b32 s17, s{sWv}, 11")
    A(f"s_add_u32 s16, s16, s17")
    A(f"s_add_u32 s16, s16, {WS_XNF}")
    A(f"v_add_u32 v5, s16, v3")
    A(f"v_lshrrev_b32 v6, 5, v2")
    A(f"v_lshlrev_b32 v7, 10, v6")
    A(f"v_bfe_u32 v1, v2, 3, 2")
    A(f"v_lshl_add_u32 v7, v1, 5, v7")
    A(f"s_lshl_b32 s16, s13, 7")
    A(f"s_add_u32 s16, s16, s14")
    A(f"v_add_u32 v7, s16, v7")
    A(f"v_lshlrev_b32 v7, 3, v7")
    A(f"v_and_b32 v1, 7, v2")
    A(f"v_add_u32 v7, v7, v1")
    A(f"v_lshlrev_b32 v7, 2, v7")
    A(f"v_add_u32 v7, {WS_MODP1}, v7")
    A("s_waitcnt lgkmcnt(0)")
    ST.mark()
    A(f"global_load_dwordx4 {v(vX,4)}, v5, s[{sWs}:{sWs+1}]")
    A(f"global_load_dwordx4 {v(vX+4,4)}, v5, s[{sWs}:{sWs+1}] offset:1024")
    A(f"global_load_dword v{vM}, v7, s[{sWs}:{sWs+1}]")
    A(f"v_bfe_u32 v4, v2, 2, 3")
    A(f"s_lshl_b32 s16, s{sWv}, 3")
    A(f"v_add_u32 v4, s16, v4")
    A(f"v_cvt_f32_u32 v5, v4")
    A(f"v_mul_f32 v5, {hex(f32_bits(1.0/2048))}, v5")
    A(f"v_cvt_f32_u32 v7, v6")
    A(f"v_mul_f32 v7, v7, v5")
    A(f"v_mul_f32 v7, 0x41000000, v7")
    for i in range(16):
        A(f"v_fmamk_f32 v{vTw+2*i}, v5, {hex(f32_bits(float(16*(i>>3)+(i&7))))}, v7")
    for i in range(16):
        A(f"v_sin_f32 v{vTw+2*i+1}, v{vTw+2*i}")
        A(f"v_cos_f32 v{vTw+2*i}, v{vTw+2*i}")
    A(f"v_and_b32 v7, 3, v2")
    A(f"v_lshl_add_u32 v7, v6, 5, v7")
    A(f"v_mul_u32_u24 v7, 68, v7")
    A(f"v_add_u32 v7, v7, v4")
    A(f"v_lshlrev_b32 v7, 2, v7")
    A(f"v_and_b32 v5, 31, v2")
    A(f"s_lshr_b32 s16, s{sWv}, 1")
    A(f"s_lshl_b32 s17, s16, 5")
    A(f"v_add_u32 v5, s17, v5")
    A(f"v_mul_u32_u24 v5, {PITCH}, v5")
    A(f"v_lshl_add_u32 v5, v6, 4, v5")
    A(f"s_lshl_b32 s17, s13, 5")
    A(f"s_add_u32 s17, s17, s14")
    A(f"s_mul_i32 s17, s17, {ZCH}")
    A(f"s_add_u32 s17, s17, {WS_ZF}")
    A(f"s_lshr_b32 s16, s{sWv}, 1")
    A(f"s_lshl_b32 s16, s16, 7")
    A(f"s_lshl_b32 s20, s15, 13")
    A(f"s_add_u32 s16, s16, s20")
    A(f"s_add_u32 s16, s16, s17")
    A(f"v_and_b32 v4, 15, v2")
    A(f"v_lshlrev_b32 v4, 9, v4")
    A(f"v_bfe_u32 v1, v2, 4, 1")
    A(f"v_lshl_add_u32 v4, v1, 5, v4")
    A(f"v_lshl_add_u32 v4, v6, 4, v4")
    A(f"v_add_u32 v4, s16, v4")
    A(f"s_lshl_b32 s16, s15, 13")
    A(f"s_add_u32 s16, s16, {LDS_TAB + 4096}")
    A(f"v_add_u32 v1, s16, v3")
    A("s_waitcnt vmcnt(3)")
    A("s_barrier")
    for f in range(4):
        A(f"ds_read_b128 {v(vW1+4*f,4)}, v3 offset:{LDS_TAB + f*1024}")
    for f in range(8):
        A(f"ds_read_b128 {v(vW3+4*f,4)}, v1 offset:{f*1024}")
    A("s_waitcnt vmcnt(0)")
    ST.mark()
    A("s_waitcnt lgkmcnt(8)")
    for mt in range(2):
        A(f"v_mfma_f32_32x32x16_bf16 {v(vD1+16*mt,16)}, {v(vW1+8*mt,4)}, {v(vX,4)}, 0")
    for mt in range(2):
        A(f"v_mfma_f32_32x32x16_bf16 {v(vD1+16*mt,16)}, {v(vW1+8*mt+4,4)}, {v(vX+4,4)}, {v(vD1+16*mt,16)}")
    for ctrl in ("quad_perm:[1,0,3,2]", "quad_perm:[2,3,0,1]", "row_half_mirror"):
        A(f"v_add_f32_dpp v{vM}, v{vM}, v{vM} {ctrl} row_mask:0xf bank_mask:0xf")
        A.nop(2)
    round_bf16(A, vM, vM)
    A(f"v_add_f32 v{vM+1}, 1.0, v{vM}")
    round_bf16(A, vM + 1, vM + 1)
    A(f"v_mul_f32 v{vM}, 0x45000000, v{vM}")
    A.nop(1)
    for i in range(4):
        A(f"v_readlane_b32 s{24+i}, v{vM}, {8*i}")
        A(f"v_readlane_b32 s{32+i}, v{vM+1}, {32+8*i}")
    for mt in range(2):
        for q in range(8):
            i = mt * 8 + q
            d = vD1 + 16 * mt + 2 * q
            t = vX + 2 * (q & 3)
            A(f"v_pk_mul_f32 {v(t,2)}, {v(d,2)}, {v(vTw+2*i,2)} op_sel:[0,0] op_sel_hi:[1,0]")
            A(f"v_pk_fma_f32 {v(t,2)}, {v(d,2)}, {v(vTw+2*i,2)}, {v(t,2)} op_sel:[1,1,0] op_sel_hi:[0,1,1] neg_hi:[1,0,0]")
            A(f"v_cvt_pk_bf16_f32 v{t}, v{t}, v{t+1}")
            A(f"ds_write_b32 v7, v{t} offset:{LDS_B + (16*mt+q)*4*PITCH}")
    for p in range(4): A(f"v_mov_b32 v{vK+p}, {'0x00003f80' if p % 2 == 0 else '0x0000bf80'}")
    A("s_waitcnt lgkmcnt(0)")
    A("s_barrier")
    ST.mark()
    for kt in range(8):
        A(f"ds_read_b128 {v(vDA+4*kt,4)}, v5 offset:{LDS_B + kt*32}")
    for kt in range(8):
        A(f"s_waitcnt lgkmcnt({7-kt})")
        cin = "0" if kt == 0 else v(vD3, 16)
        A(f"v_mfma_f32_32x32x16_bf16 {v(vD3,16)}, {v(vDA+4*kt,4)}, {v(vW3+4*kt,4)}, {cin}")
    A(f"s_cmp_eq_u32 s{sWv}, 0")
    A(f"s_cbranch_scc0 {name}_no1024")
    for kt in range(8):
        cin = "0" if kt == 0 else v(vD4, 16)
        A(f"v_mfma_f32_32x32x16_bf16 {v(vD4,16)}, {v(vDA+4*kt,4)}, {v(vK,4)}, {cin}")
    A.label(f"{name}_no1024")
    A(f"s_cmp_eq_u32 s{sWv}, 0")
    A(f"s_cselect_b32 s20, 1, 0")
    A(f"s_mov_b32 s21, 0")
    A(f"s_mov_b64 vcc, s[20:21]")
    for i in range(4):
        A(f"v_mov_b32 v{vX+i}, s{24+i}")
        A(f"v_cndmask_b32 v{vX+i}, 0, v{vX+i}, vcc")
    A.nop(4)
    for r in range(16):
        if r < 4: A(f"v_fma_f32 v{vD3+r}, v{vD3+r}, s{32+(r&3)}, v{vX+r}")
        else: A(f"v_mul_f32 v{vD3+r}, s{32+(r&3)}, v{vD3+r}")
    for RP in range(2):
        o = vX + 4 * RP
        for k, R in enumerate((2 * RP, 2 * RP + 1)):
            A(f"v_cvt_pk_bf16_f32 v{o+2*k}, v{vD3+4*R}, v{vD3+4*R+1}")
            A(f"v_cvt_pk_bf16_f32 v{o+2*k+1}, v{vD3+4*R+2}, v{vD3+4*R+3}")
    A.nop(1)
    for RP in range(2):
        o = vX + 4 * RP
        A(f"v_permlane16_swap_b32 v{o}, v{o+2}")
        A(f"v_permlane16_swap_b32 v{o+1}, v{o+3}")
        A(f"global_store_dwordx4 v4, {v(o,4)}, s[{sWs}:{sWs+1}] offset:{RP*64}{SF}")
    ST.mark()
    A(f"s_cmp_eq_u32 s{sWv}, 0")
    A(f"s_cbranch_scc0 {name}_fin")
    for i in range(4): A(f"v_mul_f32 v{vD4+i}, s{32+i}, v{vD4+i}")
    A(f"v_cvt_pk_bf16_f32 v{vD4}, v{vD4}, v{vD4+1}")
    A(f"v_cvt_pk_bf16_f32 v{vD4+1}, v{vD4+2}, v{vD4+3}")
    A(f"v_cmp_eq_u32 vcc, 0, v2")
    A(f"v_mov_b32 v{vD4+2}, 0")
    A(f"v_mov_b32 v{vD4+3}, 0")
    A(f"v_cndmask_b32 v{vD4}, 0, v{vD4}, vcc")
    A(f"v_cndmask_b32 v{vD4+1}, 0, v{vD4+1}, vcc")
    A(f"v_lshlrev_b32 v4, 4, v2")
    A(f"s_add_u32 s16, s17, {1024*16}")
    A(f"v_add_u32 v4, s16, v4")
    A(f"s_mov_b64 exec, 0xf")
    A(f"global_store_dwordx4 v4, {v(vD4,4)}, s[{sWs}:{sWs+1}]")
    A(f"s_mov_b64 exec, -1")
    A(f"s_branch {name}_fin")
    A.label(f"{name}_gemv")
    A(f"s_and_b32 s18, s14, 15")
    A(f"s_lshl_b32 s20, s13, 4")
    A(f"s_add_u32 s18, s18, s20")
    A(f"s_lshr_b32 s19, s2, 7")
    A(f"s_and_b32 s19, s19, 1")
    A(f"v_lshrrev_b32 v4, 2, v0")
    A(f"s_lshl_b32 s20, s19, 9")
    A(f"v_add_u32 v4, s20, v4")
    A(f"v_lshlrev_b32 v5, 1, v4")
    A(f"v_mul_u32_u24 v4, 12288, v4")
    A(f"v_and_b32 v6, 3, v0")
    A(f"v_lshl_add_u32 v4, v6, 4, v4")
    A(f"s_lshl_b32 s20, s18, 6")
    A(f"s_add_u32 s20, s20, 4096")
    A(f"v_add_u32 v4, s20, v4")
    A("s_waitcnt lgkmcnt(0)")
    for i in range(4):
        A(f"global_load_dwordx4 {v(vG+4*i,4)}, v4, s[{sWm}:{sWm+1}]")
        if i < 3: A(f"v_add_u32 v4, {128*12288}, v4")
    for i in range(4):
        A(f"global_load_ushort v{vC+i}, v5, s[{sC}:{sC+1}] offset:{i*256}")
    npf = 0
    if pf_parts is not None:
        A(f"s_and_b32 s23, s2, 255")
        npf = prefetch_gateup(A, 28, 23, sWv, pf_parts[0], pf_parts[1], 50, 52, pf_stride)
    A(f"s_waitcnt vmcnt({npf})")
    for i in range(4): silu_bf16(A, vC + i, 5)
    for i in range(4):
        for d in range(4):
            w = vG + 4 * i + d
            A(f"v_lshlrev_b32 v5, 16, v{w}")
            A(f"v_and_b32 v{w}, 0xffff0000, v{w}")
            op = "v_mul_f32" if i == 0 else "v_fmac_f32"
            A(f"{op} v{vAcc+2*d}, v{vC+i}, v5")
            A(f"{op} v{vAcc+2*d+1}, v{vC+i}, v{w}")
    A(f"v_lshlrev_b32 v4, 5, v0")
    A(f"v_add_u32 v4, {LDS_G}, v4")
    A(f"ds_write_b128 v4, {v(vAcc,4)}")
    A(f"ds_write_b128 v4, {v(vAcc+4,4)} offset:16")
    A(f"v_lshrrev_b32 v6, 5, v2")
    A(f"s_lshl_b32 s20, s{sWv}, 11")
    A(f"s_add_u32 s20, s20, {LDS_G}")
    A(f"v_and_b32 v5, 31, v2")
    A(f"v_lshlrev_b32 v4, 2, v5")
    A(f"v_lshl_add_u32 v4, v6, 10, v4")
    A(f"v_add_u32 v4, s20, v4")
    A("s_waitcnt lgkmcnt(0)")
    for g in range(8): A(f"ds_read_b32 v{vAcc+g}, v4 offset:{g*128}")
    A("s_waitcnt lgkmcnt(0)")
    for (x, y) in ((0, 1), (2, 3), (4, 5), (6, 7), (0, 2), (4, 6), (0, 4)):
        A(f"v_add_f32 v{vAcc+x}, v{vAcc+x}, v{vAcc+y}")
    A(f"v_lshlrev_b32 v4, 2, v0")
    A(f"v_add_u32 v4, {LDS_G2}, v4")
    A(f"ds_write_b32 v4, v{vAcc}")
    A("s_waitcnt lgkmcnt(0)")
    A("s_barrier")
    A(f"s_cmp_eq_u32 s{sWv}, 0")
    A(f"s_cbranch_scc0 {name}_fin")
    A(f"v_lshlrev_b32 v4, 2, v5")
    A(f"v_lshl_add_u32 v4, v6, 10, v4")
    A(f"v_add_u32 v4, {LDS_G2}, v4")
    for g in range(8): A(f"ds_read_b32 v{vAcc+g}, v4 offset:{g*128}")
    A("s_waitcnt lgkmcnt(0)")
    for (x, y) in ((0, 1), (2, 3), (4, 5), (6, 7), (0, 2), (4, 6), (0, 4)):
        A(f"v_add_f32 v{vAcc+x}, v{vAcc+x}, v{vAcc+y}")
    A(f"v_mov_b32 v{vAcc+1}, v{vAcc}")
    A.nop(2)
    A(f"v_permlane32_swap_b32 v{vAcc}, v{vAcc+1}")
    A.nop(1)
    A(f"v_add_f32 v{vAcc}, v{vAcc}, v{vAcc+1}")
    A(f"s_lshl_b32 s16, s19, 14")
    A(f"s_lshl_b32 s17, s18, 7")
    A(f"s_add_u32 s16, s16, s17")
    A(f"s_add_u32 s16, s16, {WS_MODP2}")
    A(f"v_lshlrev_b32 v5, 2, v5")
    A(f"v_add_u32 v5, s16, v5")
    A(f"s_mov_b32 exec_hi, 0")
    A(f"global_store_dword v5, v{vAcc}, s[{sWs}:{sWs+1}]")
    A("s_mov_b64 exec, -1")
    A.label(f"{name}_fin")
    ST.dump(f"{name}_end")
    if not stamp: A.label(f"{name}_end")
    A("s_endpgm")
    for e in check_hazards(A.lines, name): print("HAZARD", e)
    return (kernel_header(name) + A.text(), kernel_desc(name, 128, 96, 128),
            f"; @launch kernel={name} grid=(512,1,1) block=(512,1,1) lds={lds}")
```

```python
from asmlib import *
from common import *
from k_small import *
from k_l1 import ln_stats
from stamp import Stamper
from k_gemv import *
from k_l2 import table_dma

def gen_l3(name="l3_kernel", stamp=False, pf_rows=256, special_first=False):
    A = Asm()
    ST = Stamper(A, 2, stamp, vtmp=8, two=True)
    ST.mark()
    vZ = 8
    vW4 = 24
    vW5 = 24
    vT = 40
    vS = 48
    vDum = 55
    vD = 56
    vE = 56
    vTw = 88
    vX = 120
    vP = 56
    vL16 = 0
    sWs, sX = 6, 4
    sTab = 24
    sWv = 12
    MODB = 5120
    LDS_TAB = 0
    LDS_MOD = 12288
    LDS_T = LDS_MOD + 3 * MODB
    LDS_Y = LDS_T + 5 * 4608
    YB = 3072
    LDS_Z = LDS_Y + 5 * YB
    lds = LDS_Z + 16384
    LDS_H = LDS_T
    HP = 2080
    NWG = 256
    A(f"s_cmp_ge_u32 s2, {NWG}")
    A(f"s_cbranch_scc1 {name}_end")
    if special_first:
        A(f"s_sub_u32 s3, s2, 1")
        A(f"s_cmp_eq_u32 s2, 0")
        A(f"s_cselect_b32 s2, 256, s3")
    A(f"s_load_dwordx2 s[{sWs}:{sWs+1}], s[0:1], {KARG['ws']}")
    A(f"s_load_dwordx2 s[{sX}:{sX+1}], s[0:1], {KARG['x']}")
    A(f"s_load_dwordx4 s[28:31], s[0:1], {KARG['wg']}")
    A(f"s_getpc_b64 s[{sTab}:{sTab+1}]")
    A.label(f"{name}_pc")
    A(f"s_add_u32 s{sTab}, s{sTab}, tab_W4-{name}_pc")
    A(f"s_addc_u32 s{sTab+1}, s{sTab+1}, 0")
    A(f"v_lshrrev_b32 v1, 6, v0")
    A(f"v_and_b32 v2, 63, v0")
    A(f"v_readfirstlane_b32 s{sWv}, v1")
    A(f"v_lshlrev_b32 v3, 4, v2")
    A(f"s_cmp_eq_u32 s{sWv}, 8")
    A(f"s_cbranch_scc0 {name}_notw8")
    A(f"s_cmp_eq_u32 s2, 0")
    A(f"s_cbranch_scc0 {name}_end")
    A(f"v_lshrrev_b32 v6, 5, v2")
    A(f"v_and_b32 v7, 31, v2")
    A(f"v_lshlrev_b32 v5, 6, v7")
    A(f"v_lshl_add_u32 v5, v6, 5, v5")
    A(f"s_mov_b32 s13, 1024")
    A(f"s_mov_b32 s14, 1")
    A(f"s_mov_b32 s45, 0")
    A(f"v_mul_u32_u24 v4, {ZCH}, v2")
    A(f"v_add_u32 v4, {WS_ZF + 1024*16}, v4")
    A("s_waitcnt lgkmcnt(0)")
    for kt in range(4):
        A(f"global_load_dwordx4 {v(vZ+4*kt,4)}, v4, s[{sWs}:{sWs+1}]")
        if kt < 3: A(f"v_add_u32 v4, {64*ZCH}, v4")
    A(f"s_mov_b32 s47, 4")
    A(f"s_branch {name}_rolea")
    A.label(f"{name}_notw8")
    nt = table_dma(A, sTab, sWv, 12, 8, LDS_TAB, 3, 4)
    A(f"v_lshrrev_b32 v6, 5, v2")
    A(f"v_and_b32 v7, 31, v2")
    A(f"v_lshlrev_b32 v5, 6, v7")
    A(f"v_lshl_add_u32 v5, v6, 5, v5")
    A(f"s_and_b32 s13, s2, 7")
    A(f"s_lshl_b32 s13, s13, 5")
    A(f"s_lshr_b32 s14, s2, 3")
    A(f"s_add_u32 s13, s13, s14")
    A(f"s_cmp_eq_u32 s2, 256")
    A(f"s_cselect_b32 s13, 256, s13")
    A(f"s_lshl_b32 s13, s13, 2")
    A(f"s_mov_b32 s45, s13")
    A(f"s_and_b32 s17, s{sWv}, 3")
    A(f"s_add_u32 s13, s13, s17")
    A(f"s_cmp_le_u32 s13, 1024")
    A(f"s_cselect_b32 s14, 1, 0")
    A(f"s_min_u32 s13, s13, 1024")
    A(f"v_lshrrev_b32 v4, 2, v2")
    A(f"s_lshl_b32 s18, s{sWv}, 5")
    A(f"v_add_u32 v4, s18, v4")
    A(f"v_mul_u32_u24 v4, {ZCH}, v4")
    A(f"v_lshrrev_b32 v1, 2, v2")
    A(f"v_xor_b32 v1, v1, v2")
    A(f"v_and_b32 v1, 3, v1")
    A(f"v_lshl_add_u32 v4, v1, 4, v4")
    A(f"s_and_b32 s17, s{sWv}, 3")
    A(f"s_sub_u32 s18, s44, s17") if False else None
    A(f"s_lshl_b32 s18, s45, 4")
    A(f"s_add_u32 s18, s18, {WS_ZF}")
    A(f"v_add_u32 v4, s18, v4")
    A(f"s_lshl_b32 s18, s{sWv}, 11")
    A("s_waitcnt lgkmcnt(0)")
    ST.mark(1)
    A(f"s_add_u32 m0, s18, {LDS_Z}")
    A("s_nop 0")
    A(f"global_load_lds_dwordx4 v4, s[{sWs}:{sWs+1}]")
    A(f"s_add_u32 m0, s18, {LDS_Z + 1024}")
    A(f"v_add_u32 v4, {16*ZCH}, v4")
    A(f"global_load_lds_dwordx4 v4, s[{sWs}:{sWs+1}]")
    A(f"s_mov_b32 s47, s{sWv}")
    A(f"s_cmp_ge_u32 s{sWv}, 4")
    A(f"s_cbranch_scc1 {name}_roleb")
    A.label(f"{name}_rolea")
    A(f"s_lshl_b32 s17, s13, 11")
    A(f"v_add_u32 v{vE+3}, s17, v5")
    A(f"v_mov_b32 v{vL16}, v3")
    A(f"global_load_dwordx4 {v(vX,4)}, v{vE+3}, s[{sX}:{sX+1}]")
    A(f"global_load_dwordx4 {v(vX+4,4)}, v{vE+3}, s[{sX}:{sX+1}] offset:16")
    A(f"v_cvt_f32_u32 v{vE}, v7")
    A(f"v_mul_f32 v{vE}, {hex(f32_bits(1.0/1024))}, v{vE}")
    A(f"v_cvt_f32_u32 v{vE+1}, v6")
    A(f"v_mul_f32 v{vE+1}, v{vE+1}, v{vE}")
    A(f"v_mul_f32 v{vE+1}, 0x41000000, v{vE+1}")
    for i in range(16):
        A(f"v_fmamk_f32 v{vTw+2*i}, v{vE}, {hex(f32_bits(float(16*(i>>3)+(i&7))))}, v{vE+1}")
    for i in range(16):
        A(f"v_sin_f32 v{vTw+2*i+1}, v{vTw+2*i}")
        A(f"v_cos_f32 v{vTw+2*i}, v{vTw+2*i}")
    A(f"s_mul_i32 s17, s47, 4608")
    A(f"s_add_u32 s17, s17, {LDS_T}")
    A(f"v_mul_u32_u24 v{vE}, {8*144}, v6")
    A(f"v_lshl_add_u32 v{vE}, v7, 2, v{vE}")
    A(f"v_add_u32 v3, s17, v{vE}")
    A(f"v_bfe_u32 v{vE}, v7, 2, 1")
    A(f"v_lshlrev_b32 v{vE}, 4, v{vE}")
    A(f"v_lshrrev_b32 v{vE+1}, 3, v7")
    A(f"v_lshl_add_u32 v{vE}, v{vE+1}, 2, v{vE}")
    A(f"v_and_b32 v{vE+1}, 3, v7")
    A(f"v_add_u32 v{vE}, v{vE}, v{vE+1}")
    A(f"v_mul_u32_u24 v{vE}, 144, v{vE}")
    A(f"v_lshl_add_u32 v{vE}, v6, 4, v{vE}")
    A(f"v_add_u32 v4, s17, v{vE}")
    A(f"v_lshl_add_u32 v1, v7, 1, v6")
    A(f"v_mul_u32_u24 v1, 80, v1")
    A(f"s_and_b32 s17, s{sWv}, 3")
    A(f"v_xor_b32 v{vE}, s17, v2")
    A(f"v_and_b32 v{vE}, 3, v{vE}")
    A(f"v_lshlrev_b32 v{vE}, 4, v{vE}")
    A(f"v_lshl_add_u32 v{vE}, v2, 6, v{vE}")
    A(f"v_add_u32 v{vE}, {LDS_Z}, v{vE}")
    ST.mark(2)
    A("s_waitcnt vmcnt(2)")
    ST.mark(3)
    A("s_barrier")
    ST.mark(4)
    A(f"s_cmp_eq_u32 s{sWv}, 8")
    A(f"s_cbranch_scc1 {name}_nozr")
    for kt in range(4):
        A(f"ds_read_b128 {v(vZ+4*kt,4)}, v{vE} offset:{kt*4096}")
    A.label(f"{name}_nozr")
    for f in range(8):
        A(f"ds_read_b128 {v(vW4+4*f,4)}, v{vL16} offset:{LDS_TAB + f*1024}")
    A("s_waitcnt lgkmcnt(0)")
    ST.mark(5)
    for kt in range(4):
        for mt in range(2):
            cin = "0" if kt == 0 else v(vD + 16 * mt, 16)
            A(f"v_mfma_f32_32x32x16_bf16 {v(vD+16*mt,16)}, {v(vW4+16*mt+4*kt,4)}, {v(vZ+4*kt,4)}, {cin}")
    A.nop(6)
    for f in range(4):
        A(f"ds_read_b128 {v(vW5+4*f,4)}, v{vL16} offset:{LDS_TAB + 8192 + f*1024}")
    A.nop(2)
    for mt in range(2):
        for q in range(8):
            i = mt * 8 + q
            d = vD + 16 * mt + 2 * q
            t = vZ + 2 * (q & 3)
            A(f"v_pk_mul_f32 {v(t,2)}, {v(d,2)}, {v(vTw+2*i,2)} op_sel:[0,0] op_sel_hi:[1,0]")
            A(f"v_pk_fma_f32 {v(t,2)}, {v(d,2)}, {v(vTw+2*i,2)}, {v(t,2)} op_sel:[1,1,0] op_sel_hi:[0,1,1] neg_hi:[1,0,0]")
            A(f"v_cvt_pk_bf16_f32 v{t}, v{t}, v{t+1}")
            A(f"ds_write_b32 v3, v{t} offset:{(16*mt+q)*144}")
    A("s_waitcnt lgkmcnt(0)")
    for kt in range(4):
        A(f"ds_read_b128 {v(vTw+4*kt,4)}, v4 offset:{kt*32}")
    for kt in range(4):
        A(f"s_waitcnt lgkmcnt({3-kt})")
        cin = "0" if kt == 0 else v(vD, 16)
        A(f"v_mfma_f32_32x32x16_bf16 {v(vD,16)}, {v(vTw+4*kt,4)}, {v(vW5+4*kt,4)}, {cin}")
    A(f"s_mul_i32 s17, s47, {YB}")
    A(f"s_add_u32 s17, s17, {LDS_Y}")
    A(f"v_lshl_add_u32 v3, v7, 1, v6")
    A(f"v_mul_u32_u24 v3, 48, v3")
    A(f"v_add_u32 v3, s17, v3")
    A.nop(10)
    for i in range(8): A(f"v_cvt_pk_bf16_f32 v{vT+i}, v{vD+2*i}, v{vD+2*i+1}")
    A(f"ds_write_b128 v3, {v(vT,4)}")
    A(f"ds_write_b128 v3, {v(vT+4,4)} offset:16")
    for i in range(8):
        A(f"v_lshlrev_b32 v{vD+2*i}, 16, v{vT+i}")
        A(f"v_and_b32 v{vD+2*i+1}, 0xffff0000, v{vT+i}")
    A("s_waitcnt lgkmcnt(0)")
    ST.mark(6)
    A("s_barrier")
    ST.mark(7)
    A(f"s_mov_b32 s15, s13")
    A(f"s_mov_b32 s16, s14")
    A("s_waitcnt vmcnt(0)")
    A(f"s_branch {name}_row")
    A.label(f"{name}_roleb")
    A(f"v_subrev_u32 v3, 256, v0")
    A(f"v_lshlrev_b32 v4, 4, v3")
    A(f"v_add_u32 v4, {WS_MODP2}, v4")
    A(f"s_sub_u32 s15, 2048, s13")
    A(f"s_and_b32 s15, s15, 2047")
    A(f"s_and_b32 s16, s13, 1023")
    A(f"s_cmp_lg_u32 s16, 0")
    A(f"s_cselect_b32 s16, s14, 0")
    A(f"s_lshl_b32 s17, s15, 11")
    A(f"v_add_u32 v1, s17, v5")
    for p in range(2):
        for vv in range(3):
            A(f"v_add_u32 v{vT}, {vv*4096 + p*16384}, v4")
            A(f"global_load_dwordx4 {v(vP+12*p+4*vv,4)}, v{vT}, s[{sWs}:{sWs+1}]")
    A(f"global_load_dwordx4 {v(vX,4)}, v1, s[{sX}:{sX+1}]")
    A(f"global_load_dwordx4 {v(vX+4,4)}, v1, s[{sX}:{sX+1}] offset:16")
    ST.mark(2)
    A(f"s_waitcnt vmcnt(8)")
    ST.mark(3)
    A("s_barrier")
    ST.mark(4)
    npf = 0
    if pf_rows:
        rpw = pf_rows // 32 // 2
        nin = (rpw + 7) // 8
        A(f"s_and_b32 s40, s2, 7")
        A(f"s_mul_i32 s40, s40, 896")
        A(f"s_lshr_b32 s41, s2, 3")
        A(f"s_min_u32 s41, s41, 31")
        A(f"s_lshl_b32 s41, s41, 1")
        A(f"s_and_b32 s42, s{sWv}, 1")
        A(f"s_add_u32 s41, s41, s42")
        A(f"s_mul_i32 s41, s41, {rpw*7168}")
        A(f"s_add_u32 s40, s40, s41")
        A(f"s_bitcmp1_b32 s{sWv}, 1")
        A(f"s_cselect_b32 s42, s30, s28")
        A(f"s_cselect_b32 s43, s31, s29")
        A(f"v_lshrrev_b32 v{vT}, 3, v2")
        A(f"v_min_u32 v{vT}, {min(rpw,8)-1}, v{vT}")
        A(f"v_mul_u32_u24 v{vT}, 7168, v{vT}")
        A(f"v_and_b32 v{vT+1}, 7, v2")
        A(f"v_min_u32 v{vT+1}, 6, v{vT+1}")
        A(f"v_lshl_add_u32 v{vT}, v{vT+1}, 7, v{vT}")
        A(f"v_add_u32 v{vT}, s40, v{vT}")
        for i in range(nin):
            A(f"global_load_dword v{vDum}, v{vT}, s[42:43]")
            if i < nin - 1: A(f"v_add_u32 v{vT}, {8*7168}, v{vT}")
        npf = nin
    A(f"s_waitcnt vmcnt({2+npf})")
    ST.mark(5)
    for i in range(12): A(f"v_add_f32 v{vP+i}, v{vP+i}, v{vP+12+i}")
    for i in range(12): round_bf16(A, vP + i, vP + i)
    for i in range(4):
        A(f"v_add_f32 v{vP+8+i}, 1.0, v{vP+8+i}")
        round_bf16(A, vP + 8 + i, vP + 8 + i)
    A(f"v_lshrrev_b32 v4, 2, v3")
    A(f"v_mul_u32_u24 v4, 80, v4")
    A(f"v_and_b32 v{vT+1}, 3, v3")
    A(f"v_lshl_add_u32 v4, v{vT+1}, 4, v4")
    for vv in range(3):
        A(f"ds_write_b128 v4, {v(vP+4*vv,4)} offset:{LDS_MOD + vv*MODB}")
    A(f"v_lshl_add_u32 v1, v7, 1, v6")
    A(f"s_and_b32 s17, s{sWv}, 3")
    A(f"s_mul_i32 s17, s17, {YB}")
    A(f"s_add_u32 s17, s17, {LDS_Y}")
    A(f"v_sub_u32 v3, 63, v1")
    A(f"v_mul_u32_u24 v3, 48, v3")
    A(f"v_add_u32 v3, s17, v3")
    A(f"v_sub_u32 v4, 64, v1")
    A(f"v_and_b32 v4, 63, v4")
    A(f"v_mul_u32_u24 v4, 48, v4")
    A(f"v_add_u32 v4, s17, v4")
    A(f"v_mul_u32_u24 v1, 80, v1")
    A("s_waitcnt lgkmcnt(0)")
    ST.mark(6)
    A("s_barrier")
    ST.mark(7)
    YT = vD + 16
    A(f"ds_read_b128 {v(YT,4)}, v3")
    A(f"ds_read_b128 {v(YT+4,4)}, v3 offset:16")
    A(f"ds_read_b32 v{vD}, v4")
    A(f"s_waitcnt vmcnt({npf}) lgkmcnt(0)")
    A(f"v_lshlrev_b32 v{vD}, 16, v{vD}")
    for k in range(8):
        if k > 0: A(f"v_lshlrev_b32 v{vD+16-2*k}, 16, v{YT+k}")
        A(f"v_and_b32 v{vD+16-(2*k+1)}, 0xffff0000, v{YT+k}")
    A.label(f"{name}_row")
    A(f"s_lshl_b32 s46, s45, 1")
    A(f"s_add_u32 s46, s46, s47")
    A(f"s_cmp_eq_u32 s16, 0")
    A(f"s_cbranch_scc1 {name}_stage")
    GA, CB, SB = vTw, vTw + 16, vZ
    for base, vec in ((GA, 0), (CB, 2), (SB, 1)):
        for qd in range(4):
            A(f"ds_read_b128 {v(base+4*qd,4)}, v1 offset:{LDS_MOD + vec*MODB + qd*16}")
    Y = vD; PK = vT; S = vS; XF = vD + 16
    def rnd(dst_pk):
        for i in range(8): A(f"v_cvt_pk_bf16_f32 v{dst_pk+i}, v{Y+2*i}, v{Y+2*i+1}")
    def unp(src_pk):
        for i in range(8):
            A(f"v_lshlrev_b32 v{Y+2*i}, 16, v{src_pk+i}")
            A(f"v_and_b32 v{Y+2*i+1}, 0xffff0000, v{src_pk+i}")
    for i in range(8):
        A(f"v_lshlrev_b32 v{XF+2*i}, 16, v{vX+i}")
        A(f"v_and_b32 v{XF+2*i+1}, 0xffff0000, v{vX+i}")
    A("s_waitcnt lgkmcnt(8)")
    for i in range(8): A(f"v_pk_fma_f32 {v(Y+2*i,2)}, {v(Y+2*i,2)}, {v(GA+2*i,2)}, {v(XF+2*i,2)}")
    rnd(vX); unp(vX)
    for i in range(4): A(f"v_permlane16_swap_b32 v{vX+i}, v{vX+4+i}")
    A(f"s_lshl_b32 s17, s46, 11")
    A(f"s_add_u32 s17, s17, {WS_X1}")
    A(f"v_and_b32 v3, 15, v2")
    A(f"v_lshlrev_b32 v3, 6, v3")
    A(f"v_lshrrev_b32 v4, 4, v2")
    A(f"v_lshl_add_u32 v3, v4, 4, v3")
    A(f"v_add_u32 v3, s17, v3")
    A(f"global_store_dwordx4 v3, {v(vX,4)}, s[{sWs}:{sWs+1}]")
    A(f"global_store_dwordx4 v3, {v(vX+4,4)}, s[{sWs}:{sWs+1}] offset:1024")
    A(f"v_readfirstlane_b32 s21, v{Y}")
    A.nop(2)
    for i in range(16): A(f"v_subrev_f32 v{Y+i}, s21, v{Y+i}")
    cm, rinv = ln_stats(A, Y, 16, S, None, 21, hex(f32_bits(1.0 / 1024)))
    for i in range(8): A(f"v_pk_add_f32 {v(Y+2*i,2)}, {v(Y+2*i,2)}, {v(cm,2)}")
    A("s_waitcnt lgkmcnt(0)")
    for i in range(8): A(f"v_pk_mul_f32 {v(CB+2*i,2)}, {v(CB+2*i,2)}, {v(rinv,2)}")
    for i in range(8): A(f"v_pk_fma_f32 {v(Y+2*i,2)}, {v(Y+2*i,2)}, {v(CB+2*i,2)}, {v(SB+2*i,2)}")
    rnd(PK)
    A(f"s_mul_i32 s17, s47, {HP}")
    A(f"s_add_u32 s17, s17, {LDS_H}")
    A(f"v_add_u32 v3, s17, v5")
    A(f"ds_write_b128 v3, {v(PK,4)}")
    A(f"ds_write_b128 v3, {v(PK+4,4)} offset:16")
    A.label(f"{name}_stage")
    A("s_waitcnt lgkmcnt(0)")
    ST.mark(8)
    A("s_barrier")
    ST.mark(9)
    A(f"s_cmp_eq_u32 s{sWv}, 8")
    A(f"s_cbranch_scc1 {name}_fin")
    A(f"v_and_b32 v3, 7, v2")
    A(f"v_mul_u32_u24 v4, {HP}, v3")
    A(f"v_lshrrev_b32 v5, 3, v2")
    A(f"s_lshl_b32 s17, s{sWv}, 4")
    A(f"v_add_u32 v5, s17, v5")
    A(f"v_lshl_add_u32 v4, v5, 4, v4")
    A(f"v_add_u32 v4, {LDS_H}, v4")
    A(f"ds_read_b128 {v(vD,4)}, v4")
    A(f"ds_read_b128 {v(vD+4,4)}, v4 offset:128")
    A(f"s_lshl_b32 s17, s45, 1")
    A(f"v_add_u32 v6, s17, v3")
    A(f"v_lshrrev_b32 v7, 4, v6")
    A(f"v_lshlrev_b32 v7, 15, v7")
    A(f"v_and_b32 v6, 15, v6")
    A(f"v_lshl_add_u32 v7, v6, 4, v7")
    A(f"v_lshl_add_u32 v7, v5, 8, v7")
    A(f"v_add_u32 v7, {WS_H2F}, v7")
    A("s_waitcnt lgkmcnt(0)")
    A(f"global_store_dwordx4 v7, {v(vD,4)}, s[{sWs}:{sWs+1}]")
    A(f"global_store_dwordx4 v7, {v(vD+4,4)}, s[{sWs}:{sWs+1}] offset:2048")
    A.label(f"{name}_fin")
    ST.mark(10)
    ST.dump(f"{name}_end")
    if not stamp: A.label(f"{name}_end")
    A("s_endpgm")
    for e in check_hazards(A.lines, name): print("HAZARD", e)
    return (kernel_header(name) + A.text(), kernel_desc(name, 128, 96, 128),
            f"; @launch kernel={name} grid=({NWG},1,1) block=(576,1,1) lds={lds}")
```

```python
from common import *
class Stamper:
    def __init__(self, A, kid, enable, sbase=66, sws=6, swv=12, vtmp=250, two=False):
        self.two = two
        self.A = A; self.kid = kid; self.en = enable; self.s = sbase; self.n = 0; self.sws = sws; self.swv = swv; self.vt = vtmp
    def init(self):
        if not self.en: return
        for i in range(12): self.A(f"s_mov_b32 s{self.s+2*i}, 0")
    def mark(self, idx=None):
        if not self.en: return
        if self.n == 0 and idx is None: self.init()
        if idx is not None: self.n = idx
        assert self.n < 12
        import os
        op = "s_memtime" if os.environ.get("STAMP_CYC") else "s_memrealtime"
        self.A(f"{op} s[{self.s+2*self.n}:{self.s+2*self.n+1}]")
        self.n += 1
    def dump(self, lab):
        if not self.en: return
        A = self.A; vt = self.vt
        A("s_waitcnt vmcnt(0)")
        self.mark(11)
        A("s_waitcnt lgkmcnt(0)")
        if self.two:
            A(f"s_and_b32 s64, s{self.swv}, 3")
            A(f"s_cmp_eq_u32 s64, 0")
            A(f"s_cbranch_scc0 {lab}")
            A("s_mov_b64 exec, 1")
            A(f"s_lshr_b32 s64, s{self.swv}, 2")
            A(f"s_mul_i32 s64, s64, 512")
            A(f"s_add_u32 s64, s64, s2")
            A(f"s_lshl_b32 s64, s64, 6")
        else:
            A(f"s_cmp_eq_u32 s{self.swv}, 0")
            A(f"s_cbranch_scc0 {lab}")
            A("s_mov_b64 exec, 1")
            A(f"s_lshl_b32 s64, s2, 6")
        A(f"s_add_u32 s64, s64, {0x3000000 + self.kid*0x10000}")
        A(f"v_mov_b32 v{vt}, s64")
        for i in range(12):
            A(f"v_mov_b32 v{vt+1}, s{self.s+2*i}")
            A(f"global_store_dword v{vt}, v{vt+1}, s[{self.sws}:{self.sws+1}] offset:{4*i}")
        A.label(lab)
```

```python
from build import build
from k_l1 import gen_l1
from k_l2 import gen_l2
from k_l3 import gen_l3
from k_gemm3b import gen_gemm3b
from k_gemm4 import gen_gemm4
from k_gemm4b import gen_gemm4b
from k_gemm4c import gen_gemm4c
from k_gemm4d import gen_gemm4d
from k_gemm4e import gen_gemm4e
from tables import *
import sys
def full(path, stamp=False, l2pf=None, pf_rows=256, stride=128, g3kw=dict(store_flags=' sc0 sc1', wtouch=True, wd_touch='copy', copy_it=2, pretouch=True, R0=256), g4kw={}, g4=gen_gemm4e):
    ks = [gen_l1(stamp=stamp, code_range=('l2_kernel','code_end'), wcopy=False), gen_l2(stamp=stamp, pf_parts=l2pf, pf_stride=stride),
          gen_l3(stamp=stamp, pf_rows=pf_rows), gen_gemm3b(stamp=stamp, **g3kw), g4(stamp=stamp, **g4kw)]
    tab = ".type tab_W1,@object\n" + emit_table("tab_W1", table_W1() + table_W3()) + ".type tab_W4,@object\n" + emit_table("tab_W4", table_W4() + table_W5())
    last = ks[-1]
    ks[-1] = (last[0] + tab + "code_end:\n.long 0\n", last[1], last[2])
    build(ks, path)
if __name__ == "__main__":
    full(sys.argv[1] if len(sys.argv) > 1 else "full.s", stamp=(len(sys.argv) > 2))
```

```python
from asmlib import *
from common import *
from sched import Op, resolve
from stamp import Stamper
import math

def gen_gemm3b(name="gemm3_kernel", thin=True, R0=512, stage_stamps=0, copy_it=0, pretouch=False, early_zero=True, xmap=0, pro_split=True, DT=2, nomfma=False, nodma=False, notok=False, noread=False, stamp=False, noepi=False, prefetch=True, store_flags='', wtouch=True, wd_touch='copy'):
    NW = 4; NT = 4; NL = 14
    NDMA = 8
    U = 4; R = 4; NST = 16; SPS = 2
    SLOT = 32768
    A = Asm()
    ACC0 = 32
    def acc(L, j): return ACC0 + (L * NT + j) * 4
    nacc = NL * NT * 4
    accum_offset = 256
    ar = Regs("a", 0, 256)
    WF = [[ar.alloc(4, 4) for t in range(NL)] for b in range(2)]
    TF = [[[ar.alloc(4, 4) for j in range(NT)] for ks in range(SPS)] for d in range(DT)]
    CP = [ar.alloc(4, 4) for i in range(7)]
    nvgpr = accum_offset + ar.next
    vRd = [[2 + h * 7 + t for t in range(7)] for h in range(2)]
    vDma = 16; vTok = 17; vSt = 19; vLane = 20
    sWsrd = 16; sTsrd = 20; sAsrd = 24
    sW = 28; sT = 29; sM0 = 30; sTmp = 31; sCnt = 32; sWv = 33; sOdd = 38; sSing = 39
    sTj = [56, 57, 58, 59]

    ST = Stamper(A, 3, stamp, sbase=78, sws=8, swv=33, vtmp=2)
    ST.mark()
    A(f"s_cmp_ge_u32 s2, 256")
    A(f"s_cbranch_scc1 {name}_end")
    A(f"s_load_dwordx4 s[4:7], s[0:1], {KARG['wg']}")
    A(f"s_load_dwordx2 s[8:9], s[0:1], {KARG['ws']}")
    A(f"s_load_dwordx2 s[72:73], s[0:1], {KARG['wd']}")
    A(f"v_lshrrev_b32 v1, 6, v0")
    A(f"v_and_b32 v{vLane}, 63, v0")
    A(f"v_readfirstlane_b32 s{sWv}, v1")
    A(f"s_and_b32 s11, s2, 7")
    A(f"s_lshr_b32 s12, s2, 3")
    A(f"s_and_b32 s13, s12, 3")
    A(f"s_lshl_b32 s11, s11, 2")
    A(f"s_add_u32 s13, s13, s11")
    A(f"s_lshr_b32 s14, s2, 5")
    if xmap == 1:
        A(f"s_and_b32 s13, s2, 3")
        A(f"s_lshl_b32 s13, s13, 3")
        A(f"s_and_b32 s14, s12, 7")
        A(f"s_add_u32 s13, s13, s14")
        A(f"s_bfe_u32 s14, s2, 0x10002")
        A(f"s_lshl_b32 s14, s14, 2")
        A(f"s_lshr_b32 s15, s12, 3")
        A(f"s_add_u32 s14, s14, s15")
    A(f"s_and_b32 s{sOdd}, s13, 1")
    A(f"s_lshr_b32 s15, s{sWv}, 1")
    vDma2 = 18
    A(f"v_lshrrev_b32 v2, 4, v{vLane}")
    A(f"v_bfe_u32 v3, v{vLane}, 1, 3")
    A(f"v_mul_u32_u24 v5, 7168, v2")
    A(f"v_and_b32 v6, 1, v{vLane}")
    A(f"v_lshlrev_b32 v6, 4, v6")
    A(f"v_add_u32 v5, v5, v6")
    A(f"v_mov_b32 v7, 0x40000000")
    for (dst, add) in ((vDma, 0), (vDma2, 4)):
        A(f"v_add_u32 v4, {add}, v2")
        A(f"v_xor_b32 v4, v3, v4")
        A(f"v_lshlrev_b32 v6, 5, v4")
        A(f"v_add_u32 v6, v5, v6")
        A(f"v_cmp_eq_u32 vcc, 7, v4")
        A.nop(2)
        A(f"v_cndmask_b32 v{dst}, v6, v7, vcc")
    A(f"v_lshlrev_b32 v{vTok}, 4, v{vLane}")
    A(f"v_mov_b32 v{vSt}, v{vTok}")
    A(f"v_lshrrev_b32 v22, 4, v{vLane}")
    A(f"v_bfe_u32 v24, v{vLane}, 2, 2")
    A(f"v_and_b32 v25, 3, v{vLane}")
    A(f"v_lshl_add_u32 v27, v22, 3, v24")
    A(f"v_lshlrev_b32 v26, 8, v27")
    A(f"v_lshl_add_u32 v26, v25, 3, v26")
    A(f"v_and_b32 v23, 1, v22")
    A(f"v_lshl_add_u32 v27, v23, 2, v24")
    for L in range(7):
        A(f"v_xor_b32 v28, {L}, v27")
        A(f"v_lshl_add_u32 v{vRd[0][L]}, v28, 5, v26")
        A(f"v_add_u32 v{vRd[1][L]}, 0x10000, v{vRd[0][L]}")
    if early_zero:
        for r in range(nacc): A(f"v_mov_b32 v{ACC0+r}, 0")
    A(f"s_waitcnt lgkmcnt(0)")
    A(f"s_cmp_eq_u32 s15, 0")
    A(f"s_cselect_b32 s{sWsrd}, s4, s6")
    A(f"s_cselect_b32 s{sWsrd+1}, s5, s7")
    A(f"s_and_b32 s35, s{sWv}, 1")
    A(f"s_mul_i32 s36, s35, {NDMA*4*7168}")
    A(f"s_mul_i32 s37, s13, 224")
    A(f"s_add_u32 s36, s36, s37")
    A(f"s_add_u32 s{sWsrd}, s{sWsrd}, s36")
    A(f"s_addc_u32 s{sWsrd+1}, s{sWsrd+1}, 0")
    A(f"s_sub_u32 s{sWsrd+2}, {1024*7168}, s36")
    A(f"s_mov_b32 s{sWsrd+3}, 0x20000")
    A(f"s_lshl_b32 s{sM0}, s15, 14")
    A(f"s_mul_i32 s35, s35, {NDMA*1024}")
    A(f"s_add_u32 s{sM0}, s{sM0}, s35")
    A(f"s_lshl_b32 s35, s14, 4")
    A(f"s_lshl_b32 s36, s{sWv}, 2")
    A(f"s_add_u32 s35, s35, s36")
    A(f"s_lshl_b32 s36, s35, 15")
    A(f"s_add_u32 s36, s36, {WS_H2F}")
    A(f"s_add_u32 s{sTsrd}, s8, s36")
    A(f"s_addc_u32 s{sTsrd+1}, s9, 0")
    A(f"s_mov_b32 s{sTsrd+2}, {NT*32768}")
    A(f"s_mov_b32 s{sTsrd+3}, 0x20000")
    A(f"s_lshr_b32 s36, s35, 1")
    A(f"s_mul_i32 s36, s36, 224")
    A(f"s_mul_i32 s37, s13, 7")
    A(f"s_add_u32 s36, s36, s37")
    A(f"s_lshl_b32 s36, s36, 10")
    A(f"s_add_u32 s36, s36, {WS_ACT}")
    A(f"s_add_u32 s{sAsrd}, s8, s36")
    A(f"s_addc_u32 s{sAsrd+1}, s9, 0")
    A(f"s_mov_b32 s{sAsrd+2}, {(224+7)*1024}")
    A(f"s_mov_b32 s{sAsrd+3}, 0x20000")
    if prefetch:
        A(f"s_mul_i32 s74, s2, 28672")
        A(f"s_add_u32 s72, s72, s74")
        A(f"s_addc_u32 s73, s73, 0")
        A(f"s_mov_b32 s74, 28672")
        A(f"s_mov_b32 s75, 0x20000")
        if wd_touch != 'copy': A(f"v_lshlrev_b32 v21, 7, v0")
    A(f"s_cmp_lt_u32 s2, 128")
    A(f"s_cbranch_scc0 {name}_nofl")
    A(f"s_lshl_b32 s76, s2, 7")
    A(f"s_add_u32 s76, s76, 0x20000")
    A(f"v_mov_b32 v30, s76")
    A(f"v_mov_b32 v31, 0")
    A(f"s_mov_b64 exec, 1")
    A(f"global_store_dword v30, v31, s[8:9]")
    A(f"s_mov_b64 exec, -1")
    A.label(f"{name}_nofl")
    if wd_touch == 'copy':
        A(f"s_mul_i32 s76, s{sWv}, 7168")
        A(f"v_lshlrev_b32 v21, 4, v{vLane}")
        A(f"v_add_u32 v21, s76, v21")
        A(f"v_lshrrev_b32 v28, 3, v{vLane}")
        A(f"s_mov_b32 s77, 458752")
        A(f"v_mul_lo_u32 v28, v28, s77")
        A(f"v_and_b32 v31, 7, v{vLane}")
        A(f"v_lshl_add_u32 v28, v31, 4, v28")
        A(f"s_mul_i32 s76, s2, {14*128}")
        A(f"s_add_u32 s76, s76, {WS_WDT}")
        A(f"v_add_u32 v1, s76, v28")
        if not thin:
            A(f"v_min_u32 v0, 55, v{vLane}")
            A(f"v_lshlrev_b32 v0, 7, v0")
            A(f"s_mul_i32 s76, s{sWv}, 7168")
            A(f"v_add_u32 v0, s76, v0")
    if wtouch and not thin:
        A(f"s_lshl_b32 s76, s14, 6")
        A(f"s_add_u32 s76, s76, 512")
        A(f"v_and_b32 v29, 31, v{vLane}")
        A(f"v_add_u32 v29, s76, v29")
        A(f"v_mul_u32_u24 v29, 7168, v29")
        A(f"v_lshrrev_b32 v28, 5, v{vLane}")
        A(f"v_lshl_add_u32 v29, v28, 7, v29")
    if thin:
        RS = (1024 - R0) // 8; RW = RS // 16
        A(f"s_and_b32 s77, s{sWv}, 1")
        A(f"s_lshl_b32 s76, s14, 1")
        A(f"s_add_u32 s76, s76, s77")
        A(f"s_mul_i32 s76, s76, {RW}")
        A(f"s_add_u32 s76, s76, {R0}")
        A(f"s_lshl_b32 s77, s77, 5")
        A(f"s_sub_u32 s76, s76, s77")
        A(f"v_lshrrev_b32 v29, 2, v{vLane}")
        A(f"v_add_u32 v29, s76, v29")
        A(f"v_mul_u32_u24 v29, 7168, v29")
        A(f"v_and_b32 v28, 1, v{vLane}")
        A(f"v_mul_u32_u24 v28, 92, v28")
        A(f"v_add_u32 v29, v29, v28")
        A(f"v_bfe_u32 v28, v{vLane}, 1, 1")
        A(f"v_lshl_add_u32 v29, v28, 7, v29")
        A(f"v_mov_b32 v28, 0x40000000")
        A(f"v_cmp_gt_u32 vcc, {4*RW}, v{vLane}")
        A.nop(2)
        A(f"v_cndmask_b32 v29, v28, v29, vcc")
        A(f"v_lshlrev_b32 v0, 7, v{vLane}")
        A(f"s_mul_i32 s76, s{sWv}, 7168")
        A(f"v_add_u32 v0, s76, v0")
        A(f"v_cmp_gt_u32 vcc, 7, v{vLane}")
        A.nop(2)
        A(f"v_cndmask_b32 v0, v28, v0, vcc")
        A(f"s_mov_b32 s62, 0")
        A(f"s_mov_b32 s63, 0")
    def dma_ops(tag, slot, k):
        o = []
        o.append(Op(f"s_add_u32 m0, s{sM0}, {slot*SLOT + k*1024}"))
        o.append(Op(f"s_add_u32 s{sTmp}, s{sW}, {k*4*7168}"))
        vd = vDma if ((k >> 1) & 1) == 0 else vDma2
        if nodma: o.append(Op("s_nop 0"))
        else: o.append(Op(f"buffer_load_dwordx4 v{vd}, s[{sWsrd}:{sWsrd+3}], s{sTmp} offen lds", vm=tag))
        return o
    def tok_op(ring, ks, j, tag):
        if notok: return Op("s_nop 0")
        return Op(f"buffer_load_dwordx4 {a(TF[ring][ks][j],4)}, v{vTok}, s[{sTsrd}:{sTsrd+3}], s{sTj[j]} offen offset:{ks*1024}", vm=tag)
    def set_T(stage):
        return [Op(f"s_mov_b32 s{sTj[j]}, {j*32768 + stage*2048}") for j in range(NT)]
    def inc_T():
        return [Op(f"s_add_u32 s{sTj[j]}, s{sTj[j]}, 2048") for j in range(NT)]

    pro = []
    pro.append(Op(f"s_mov_b32 s{sW}, 0"))
    late = []
    for st in range(3):
        tgt = pro if (st < 2 or not pro_split) else late
        for k in range(NDMA):
            tgt += dma_ops((lambda it, st=st, k=k: ('W', st, k)), st, k)
        if st == 0:
            pro += set_T(0)
            for ks in range(SPS):
                for j in range(NT):
                    pro.append(tok_op(0, ks, j, (lambda it, ks=ks, j=j: ('T', 0, ks, j))))
        tgt.append(Op(f"s_add_u32 s{sW}, s{sW}, {64*7168}"))
    tgt = late if pro_split else pro
    for d in range(1, DT):
        tgt += set_T(d)
        for ks in range(SPS):
            if d == DT - 1 and ks == SPS - 1: continue
            for j in range(NT):
                tgt.append(tok_op(d, ks, j, (lambda it, d=d, ks=ks, j=j: ('T', d, ks, j))))
    if wtouch and not thin:
        for i, off in enumerate((0, 92)):
            tgt.append(Op(f"buffer_load_dword v30, v29, s[{sWsrd}:{sWsrd+3}], 0 offen offset:{off}", vm=lambda it, i=i: ('PW', i)))
    if not early_zero:
        for r in range(nacc):
            pro.append(Op(f"v_mov_b32 v{ACC0+r}, 0"))
    pro.append(Op(f"s_mov_b32 s{sCnt}, 0"))
    if not nodma:
        pro.append(Op(wait_vm=lambda it: [('W', 0, k) for k in range(NDMA)]))
    pro.append(Op("s_barrier"))
    def rd_ops(buf, slot, ks):
        o = []
        for L in range(7):
            for mx in range(2):
                for q in range(2):
                    if noread: continue
                    o.append(Op(f"ds_read_b64_tr_b16 {a(WF[buf][mx*7+L]+2*q,2)}, v{vRd[slot>>1][L]} offset:{(slot&1)*SLOT + mx*16384 + ks*8192 + q*1024}"))
        return o
    pro += rd_ops(0, 0, 0)
    pro += late

    body = []
    for st in range(U):
        for ks in range(SPS):
            cur = (st * SPS + ks) & 1
            nst, nks = (st, ks + 1) if ks < SPS - 1 else (st + 1, 0)
            pst, pks = (st, ks - 1) if ks > 0 else (st - 1, SPS - 1)
            tk = []
            for j in range(NT):
                tk.append(tok_op((pst % DT), pks, j, (lambda it, pst=pst, pks=pks, j=j: ('T', it * U + pst + DT, pks, j))))
            tkinc = inc_T() if ks == 0 else []
            dm = []
            per = NDMA // SPS
            for k in range(ks * per, (ks + 1) * per):
                dm.append(dma_ops((lambda it, st=st, k=k: ('W', it * U + st + 3, k)), (st + 3) % R, k))
            dmend = [Op(f"s_add_u32 s{sW}, s{sW}, {64*7168}")] if ks == SPS - 1 else []
            rd = rd_ops(cur ^ 1, nst % R, nks)
            head = [Op("s_waitcnt lgkmcnt(0)")]
            if not notok:
                head.append(Op(wait_vm=lambda it, st=st, ks=ks: [('T', it * U + st, ks, j) for j in range(NT)]))
            mf = []
            for L in range(7):
                for mx in range(2):
                    for j in range(NT):
                        if nomfma: mf.append(Op("s_nop 0"))
                        else:
                            LL = mx * 7 + L
                            mf.append(Op(f"v_mfma_f32_16x16x32_bf16 {v(acc(LL,j),4)}, {a(WF[cur][LL],4)}, {a(TF[st%DT][ks][j],4)}, {v(acc(LL,j),4)}"))
            nm = len(mf)
            gaps = [[] for _ in range(nm)]
            if ks == SPS - 1:
                b = []
                if not nodma:
                    b.append(Op(wait_vm=lambda it, st=st: [('W', it * U + st + 1, k) for k in range(NDMA)]))
                b.append(Op("s_barrier"))
                gaps[0] += b
            g = 1
            for o in rd:
                gaps[g].append(o); g += 1
                if g % 7 == 0: g += 1
            holes = [7, 14, 21, 28, 35, 36, 38, 40, 42, 44, 46, 48, 50, 52]
            hi = 0
            for o in tk:
                gaps[holes[hi]].append(o); hi += 1
            gaps[holes[hi]] += tkinc; hi += 1
            for d in dm:
                gaps[holes[hi]] += d; hi += 1
            gaps[holes[hi]] += dmend
            if thin and ks == 0:
                t_ops = []
                if wtouch:
                    t_ops += [Op(f"buffer_load_dword v30, v29, s[{sWsrd}:{sWsrd+3}], s62 offen", vm=lambda it, st=st: ('TW', it, st)),
                              Op(f"s_add_u32 s62, s62, {RS*7168}"), Op(f"s_cmp_eq_u32 s62, {8*RS*7168}"), Op(f"s_cselect_b32 s62, 0x10000000, s62")]
                gaps[50] += t_ops
                if pretouch:
                    gaps[52] += [Op(f"buffer_load_dword v30, v0, s[72:75], s63 offen", vm=lambda it, st=st: ('TD', it, st)),
                                 Op(f"s_add_u32 s63, s63, {7*128}"), Op(f"s_cmp_eq_u32 s63, {8*7*128}"), Op(f"s_cselect_b32 s63, 0x10000000, s63")]
            if prefetch and wd_touch == 'copy' and pretouch and not thin and st in (1, 3) and ks == 0:
                gaps[52] += [Op(f"s_lshl_b32 s76, s{sCnt}, 1"), Op(f"s_add_u32 s76, s76, {(st>>1)}"),
                             Op(f"s_cmp_eq_u32 s76, s{sWv}"), Op(f"s_cselect_b32 s76, 0, 0x10000000"),
                             Op(f"buffer_load_dword v30, v31, s[72:75], s76 offen", vm=lambda it, st=st: ('PT', it, st))] if False else \
                            [Op(f"s_lshl_b32 s76, s{sCnt}, 1"), Op(f"s_add_u32 s76, s76, {(st>>1)}"),
                             Op(f"s_cmp_eq_u32 s76, s{sWv}"), Op(f"s_cselect_b32 s76, 0, 0x10000000"),
                             Op(f"buffer_load_dword v30, v0, s[72:75], s76 offen", vm=lambda it, st=st: ('PT', it, st))]
            if prefetch and wd_touch == 'copy':
                li = {(0, 0): [0], (0, 1): [1], (1, 0): [2], (1, 1): [3], (2, 0): [4], (2, 1): [5], (3, 0): [6]}.get((st, ks), [])
                for i in li:
                    gaps[55] += [Op(f"s_cmp_eq_u32 s{sCnt}, {copy_it}"), Op(f"s_cselect_b32 s76, 0, 0x10000000"), Op(f"s_add_u32 s76, s76, {i*1024}"),
                                 Op(f"buffer_load_dwordx4 {a(CP[i],4)}, v21, s[72:75], s76 offen", vm=lambda it, i=i: ('CL', it, i))]
                    lab = f"{name}_cs{i}"
                    gaps[53] += [Op(f"s_cmp_eq_u32 s{sCnt}, {copy_it+1}"), Op(f"s_cbranch_scc0 {lab}"),
                                 Op(f"s_mul_i32 s76, s{sWv}, 7"), Op(f"s_add_u32 s76, s76, {i}"),
                                 Op(f"s_and_b32 s77, s76, 1"), Op(f"s_mul_i32 s77, s77, {8*458752}"),
                                 Op(f"s_lshr_b32 s76, s76, 1"), Op(f"s_lshl_b32 s76, s76, 7"), Op(f"s_add_u32 s76, s76, s77"),
                                 Op(f"v_add_u32 v31, s76, v1"),
                                 Op(f"global_store_dwordx4 v31, {a(CP[i],4)}, s[8:9]"),
                                 Op(f"{lab}:")]
            if prefetch and wd_touch == 'loop' and st == 1 and ks == 0:
                gaps[54] += [Op(f"s_cmp_eq_u32 s{sCnt}, s{sWv}"), Op(f"s_cselect_b32 s76, 0, 0x10000000"),
                             Op(f"buffer_load_dword v30, v21, s[72:75], s76 offen", vm=lambda it: ('P', it))]
            if prefetch and wd_touch == 'late' and st in (1, 3) and ks == 0:
                gaps[54] += [Op(f"s_lshl_b32 s76, s{sCnt}, 1"), Op(f"s_add_u32 s76, s76, {(st>>1)}"), Op(f"s_sub_u32 s76, s76, 4"),
                             Op(f"s_cmp_eq_u32 s76, s{sWv}"), Op(f"s_cselect_b32 s76, 0, 0x10000000"),
                             Op(f"buffer_load_dword v30, v21, s[72:75], s76 offen", vm=lambda it, st=st: ('P', it, st))]
            body += head
            for g in range(nm):
                body.append(mf[g]); body += gaps[g]
            if stamp and stage_stamps and ks == SPS - 1:
                import os
                op_ = "s_memtime" if os.environ.get("STAMP_CYC") else "s_memrealtime"
                body += [Op(f"s_cmp_eq_u32 s{sCnt}, {stage_stamps-1}"), Op(f"s_cbranch_scc0 {name}_ss{st}"),
                         Op(f"{op_} s[{78+2*(3+st)}:{78+2*(3+st)+1}]"), Op(f"{name}_ss{st}:")]
    body.append(Op(f"s_add_u32 s{sCnt}, s{sCnt}, 1"))
    if stamp:
        import os
        op = "s_memtime" if os.environ.get("STAMP_CYC") else "s_memrealtime"
        for i in (range(1, 6) if not stage_stamps else []):
            body.append(Op(f"s_cmp_eq_u32 s{sCnt}, {i}"))
            body.append(Op(f"s_cbranch_scc0 {name}_sk{i}"))
            body.append(Op(f"{op} s[{78+2*(2+i)}:{78+2*(2+i)+1}]"))
            body.append(Op(f"{name}_sk{i}:"))
    body.append(Op(f"s_cmp_lt_u32 s{sCnt}, {NST//U}"))
    pl, bl, _ = resolve(pro, body, NST // U)
    ST.mark()
    for l in pl: A(l)
    ST.mark()
    A(".p2align 6")
    A.label(f"{name}_loop")
    for l in bl: A(l)
    A(f"s_cbranch_scc1 {name}_loop")
    ST.mark(8)
    if prefetch and wd_touch == 'end':
        A(f"buffer_load_dword v30, v21, s[72:75], 0 offen")
    A.nop(10)
    c0 = -2.0 * math.sqrt(2.0 / math.pi) * math.log2(math.e)
    c1 = c0 * 0.044715
    vC0, vC1, vONE = 2, 4, 6
    for r, val in ((vC0, c0), (vC1, c1), (vONE, 1.0)):
        A(f"v_mov_b32 v{r}, {hex(f32_bits(val))}")
        A(f"v_mov_b32 v{r+1}, {hex(f32_bits(val))}")
    T = 22
    def geglu(tiles):
        n = len(tiles)
        prs = [(g + 2 * p, u + 2 * p) for (g, u) in tiles for p in range(2)]
        for i, (g, u) in enumerate(prs): A(f"v_pk_mul_f32 {v(T+2*i,2)}, {v(g,2)}, {v(g,2)}")
        for i, (g, u) in enumerate(prs): A(f"v_pk_fma_f32 {v(T+2*i,2)}, {v(T+2*i,2)}, {v(vC1,2)}, {v(vC0,2)}")
        for i, (g, u) in enumerate(prs): A(f"v_pk_mul_f32 {v(T+2*i,2)}, {v(T+2*i,2)}, {v(g,2)}")
        for i in range(2 * len(prs)): A(f"v_exp_f32 v{T+i}, v{T+i}")
        for i, (g, u) in enumerate(prs): A(f"v_pk_mul_f32 {v(u,2)}, {v(u,2)}, {v(g,2)}")
        for i, (g, u) in enumerate(prs): A(f"v_pk_add_f32 {v(T+2*i,2)}, {v(T+2*i,2)}, {v(vONE,2)}")
        for i in range(2 * len(prs)): A(f"v_rcp_f32 v{T+i}, v{T+i}")
        A("s_nop 0")
        for i, (g, u) in enumerate(prs): A(f"v_pk_mul_f32 {v(u,2)}, {v(u,2)}, {v(T+2*i,2)}")
        return prs
    if not noepi:
        cnt = 0
        for jp in range(2):
            for L in range(7):
                prs = geglu([(acc(L, 2*jp), acc(7 + L, 2*jp)), (acc(L, 2*jp+1), acc(7 + L, 2*jp+1))])
                o = 8 + 4 * (cnt & 1); cnt += 1
                for i, (g, u) in enumerate(prs): A(f"v_cvt_pk_bf16_f32 v{o+i}, v{u}, v{u+1}")
                A(f"s_mov_b32 s{sTmp}, {(jp*224 + L)*1024}")
                A("s_nop 0")
                A(f"v_permlane16_swap_b32 v{o}, v{o+2}")
                A(f"v_permlane16_swap_b32 v{o+1}, v{o+3}")
                A(f"buffer_store_dwordx4 {v(o,4)}, v{vSt}, s[{sAsrd}:{sAsrd+3}], s{sTmp} offen{store_flags}")
    ST.dump(f"{name}_end")
    if not stamp: A.label(f"{name}_end")
    A("s_endpgm")
    errs = check_hazards(A.lines + bl, name)
    for e in errs: print("HAZARD", e)
    lds = R * SLOT
    text = kernel_header(name) + A.text()
    desc = kernel_desc(name, nvgpr, 102, accum_offset)
    launch = f"; @launch kernel={name} grid=(256,1,1) block=({NW*64},1,1) lds={lds}"
    return text, desc, launch
```

```python
from asmlib import *
from common import *
import os
SF = os.environ.get('SF_GEMM4E', '')
from sched import Op, resolve
from stamp import Stamper

def gen_gemm4e(name="gemm4_kernel", SPS=4, R=4, DT=2, nomfma=False, stamp=False, wdt=True):
    NW = 4; NT = 2; NN = 4; TN = 64
    NST = 3584 // (32 * SPS)
    U = R
    assert NST % U == 0 and U % DT == 0
    ROWB = 128; SLOT = 32 * SPS * ROWB
    RPI = 8
    NDMA = (32 * SPS // RPI) // NW
    A = Asm()
    ACC0 = 32
    def acc(T, j): return ACC0 + (T * NT + j) * 4
    nacc = NN * NT * 4
    vr = Regs("v", ACC0 + nacc, 256)
    WF = [[vr.alloc(4, 4) for t in range(NN)] for b in range(2)]
    TF = [[[vr.alloc(4, 4) for j in range(NT)] for ks in range(SPS)] for d in range(DT)]
    XR = vr.alloc(16, 4)
    GB = vr.alloc(16, 4)
    nvgpr = vr.next; accum_offset = (nvgpr + 3) // 4 * 4
    vRd = [2 + t for t in range(NN)]
    vDma = [16, 17]; vTok = 18; vX = 19; vLane = 20; vOut = [10, 11]
    sWsrd = 16; sTsrd = 20; sOsrd = 24; sXsrd = 40
    sW = 28; sM0 = 30; sTmp = 31; sCnt = 32; sWv = 33; sT = 56
    LDS_GB = R * SLOT
    ST = Stamper(A, 4, stamp, sbase=78, sws=8, swv=33, vtmp=2)
    ST.mark()
    A(f"s_cmp_ge_u32 s2, 256")
    A(f"s_cbranch_scc1 {name}_end")
    A(f"s_load_dwordx2 s[4:5], s[0:1], {KARG['wd']}")
    A(f"s_load_dwordx2 s[6:7], s[0:1], {KARG['out']}")
    A(f"s_load_dwordx2 s[8:9], s[0:1], {KARG['ws']}")
    A(f"v_lshrrev_b32 v1, 6, v0")
    A(f"v_and_b32 v{vLane}, 63, v0")
    A(f"v_readfirstlane_b32 s{sWv}, v1")
    A(f"s_and_b32 s11, s2, 7")
    A(f"s_lshr_b32 s12, s2, 3")
    A(f"s_lshr_b32 s13, s11, 1")
    A(f"s_lshl_b32 s13, s13, 2")
    A(f"s_and_b32 s14, s12, 3")
    A(f"s_add_u32 s13, s13, s14")
    A(f"s_and_b32 s14, s11, 1")
    A(f"s_lshl_b32 s14, s14, 3")
    A(f"s_lshr_b32 s15, s12, 2")
    A(f"s_add_u32 s14, s14, s15")
    A(f"v_lshrrev_b32 v2, 3, v{vLane}")
    A(f"v_bfe_u32 v3, v{vLane}, 1, 2")
    A(f"v_bfe_u32 v4, v{vLane}, 4, 1")
    A(f"v_lshlrev_b32 v5, {7 if wdt else 11}, v2")
    A(f"v_and_b32 v6, 1, v{vLane}")
    A(f"v_lshl_add_u32 v5, v6, 4, v5")
    for e in range(2):
        A(f"v_add_u32 v6, {2*e}, v4")
        A(f"v_xor_b32 v6, v3, v6")
        A(f"v_lshl_add_u32 v{vDma[e]}, v6, 5, v5")
    A(f"v_lshrrev_b32 v22, 4, v{vLane}")
    A(f"v_lshrrev_b32 v23, 1, v22")
    A(f"v_lshlrev_b32 v{vTok}, 10, v23")
    A(f"v_and_b32 v23, 1, v22")
    A(f"v_lshl_add_u32 v{vTok}, v23, 9, v{vTok}")
    A(f"v_and_b32 v29, 15, v{vLane}")
    A(f"v_lshl_add_u32 v{vTok}, v29, 4, v{vTok}")
    A(f"v_bfe_u32 v24, v{vLane}, 2, 2")
    A(f"v_and_b32 v25, 3, v{vLane}")
    A(f"v_lshl_add_u32 v27, v22, 3, v24")
    A(f"v_lshlrev_b32 v26, 7, v27")
    A(f"v_lshl_add_u32 v26, v25, 3, v26")
    A(f"v_lshrrev_b32 v27, 1, v24")
    A(f"v_lshl_add_u32 v27, v23, 1, v27")
    for T in range(NN):
        A(f"v_xor_b32 v28, {T}, v27")
        A(f"v_lshl_add_u32 v{vRd[T]}, v28, 5, v26")
    A(f"v_lshlrev_b32 v30, 5, v23")
    A(f"v_lshrrev_b32 v28, 1, v22")
    A(f"v_lshl_add_u32 v30, v28, 4, v30")
    A(f"v_lshl_add_u32 v{vX}, v29, 11, v30")
    A(f"s_lshl_b32 s35, s13, 7")
    A(f"s_lshl_b32 s36, s{sWv}, 5")
    A(f"s_add_u32 s35, s35, s36")
    for j in range(NT):
        A(f"v_add_u32 v24, s35, v29")
        if j: A(f"v_add_u32 v24, 16, v24")
        A(f"v_lshrrev_b32 v25, 3, v24")
        A(f"v_lshlrev_b32 v25, 2, v25")
        A(f"v_and_b32 v26, 3, v24")
        A(f"v_add_u32 v25, v25, v26")
        A(f"v_sub_u32 v26, 2048, v25")
        A(f"v_and_b32 v27, 4, v24")
        A(f"v_cmp_ne_u32 vcc, 0, v27")
        A.nop(2)
        A(f"v_cndmask_b32 v25, v25, v26, vcc")
        A(f"v_mov_b32 v26, 1024")
        A(f"v_cmp_eq_u32 vcc, 4, v24")
        A.nop(2)
        A(f"v_cndmask_b32 v25, v25, v26, vcc")
        A(f"v_lshl_add_u32 v{vOut[j]}, v25, 11, v30")
    A(f"s_waitcnt lgkmcnt(0)")
    ST.mark()
    PITCH = 128 if wdt else 2048
    if wdt:
        A(f"s_mul_i32 s36, s{sWv}, {NDMA*RPI*128}")
        A(f"s_mul_i32 s37, s14, 458752")
        A(f"s_add_u32 s36, s36, s37")
        A(f"s_add_u32 s36, s36, {WS_WDT}")
        A(f"s_add_u32 s{sWsrd}, s8, s36")
        A(f"s_addc_u32 s{sWsrd+1}, s9, 0")
        A(f"s_mul_i32 s36, s{sWv}, {NDMA*RPI*128}")
        A(f"s_sub_u32 s{sWsrd+2}, 458752, s36")
        A(f"s_mov_b32 s{sWsrd+3}, 0x20000")
    else:
        A(f"s_mul_i32 s36, s{sWv}, {NDMA*RPI*2048}")
        A(f"s_lshl_b32 s37, s14, 7")
        A(f"s_add_u32 s36, s36, s37")
        A(f"s_add_u32 s{sWsrd}, s4, s36")
        A(f"s_addc_u32 s{sWsrd+1}, s5, 0")
        A(f"s_sub_u32 s{sWsrd+2}, {3584*2048}, s36")
        A(f"s_mov_b32 s{sWsrd+3}, 0x20000")
    A(f"s_mul_i32 s{sM0}, s{sWv}, {NDMA*1024}")
    A(f"s_lshl_b32 s38, s13, 2")
    A(f"s_add_u32 s38, s38, s{sWv}")
    A(f"s_mul_i32 s36, s38, {224*1024}")
    A(f"s_add_u32 s36, s36, {WS_ACT}")
    A(f"s_add_u32 s{sTsrd}, s8, s36")
    A(f"s_addc_u32 s{sTsrd+1}, s9, 0")
    A(f"s_mov_b32 s{sTsrd+2}, {224*1024}")
    A(f"s_mov_b32 s{sTsrd+3}, 0x20000")
    A(f"s_lshl_b32 s37, s14, 7")
    A(f"s_add_u32 s{sOsrd}, s6, s37")
    A(f"s_addc_u32 s{sOsrd+1}, s7, 0")
    A(f"s_sub_u32 s{sOsrd+2}, {2048*2048}, s37")
    A(f"s_mov_b32 s{sOsrd+3}, 0x20000")
    A(f"s_lshl_b32 s36, s35, 11")
    A(f"s_add_u32 s36, s36, s37")
    A(f"s_add_u32 s37, s36, {WS_X1}")
    A(f"s_add_u32 s{sXsrd}, s8, s37")
    A(f"s_addc_u32 s{sXsrd+1}, s9, 0")
    A(f"s_sub_u32 s{sXsrd+2}, {2048*2048}, s36")
    A(f"s_mov_b32 s{sXsrd+3}, 0x20000")
    vG = 12
    A(f"s_lshl_b32 s37, s14, 8")
    A(f"s_add_u32 s37, s37, {WS_MODP2 + 3072*4}")
    A(f"s_add_u32 s44, s8, s37")
    A(f"s_addc_u32 s45, s9, 0")
    A(f"v_lshlrev_b32 v28, 2, v{vLane}")
    A(f"v_add_u32 v29, 16384, v28")
    gb_load = [Op(f"global_load_dword v{vG}, v28, s[44:45]", vm=lambda it: ('G', 0)),
               Op(f"global_load_dword v{vG+1}, v29, s[44:45]", vm=lambda it: ('G', 1))]
    gb_proc = [Op(wait_vm=lambda it: [('G', 0), ('G', 1)])]
    for t in [f"v_add_f32 v{vG}, v{vG}, v{vG+1}", f"v_cvt_pk_bf16_f32 v{vG}, v{vG}, v{vG}", f"v_and_b32 v{vG}, 0xffff0000, v{vG}",
              f"v_add_u32 v28, {LDS_GB}, v28", f"ds_write_b32 v28, v{vG}", f"s_waitcnt lgkmcnt(0)"]:
        gb_proc.append(Op(t))
    x_load = []
    for j in range(NT):
        for P in range(2):
            x_load.append(Op(f"s_mov_b32 s{sTmp}, {j*16*2048 + P*64}"))
            x_load.append(Op(f"buffer_load_dwordx4 {v(XR+4*(j*2+P),4)}, v{vX}, s[{sXsrd}:{sXsrd+3}], s{sTmp} offen", vm=lambda it, j=j, P=P: ('X', j, P)))
    def dma_ops(tag, slot, k):
        return [Op(f"s_add_u32 m0, s{sM0}, {slot*SLOT + k*1024}"),
                Op(f"s_add_u32 s{sTmp}, s{sW}, {k*RPI*PITCH}"),
                Op(f"buffer_load_dwordx4 v{vDma[k&1]}, s[{sWsrd}:{sWsrd+3}], s{sTmp} offen lds", vm=tag)]
    assert (NDMA % 2) == 0
    def tok_op(ring, ks, j, tag):
        off = ks * 2048 + j * 256
        assert off < 4096 * 2
        if off < 4096:
            return Op(f"buffer_load_dwordx4 {v(TF[ring][ks][j],4)}, v{vTok}, s[{sTsrd}:{sTsrd+3}], s{sT} offen offset:{off}", vm=tag)
        return Op(f"buffer_load_dwordx4 {v(TF[ring][ks][j],4)}, v{vTok2}, s[{sTsrd}:{sTsrd+3}], s{sT} offen offset:{off-4096}", vm=tag)
    vTok2 = 14
    A(f"v_add_u32 v{vTok2}, 4096, v{vTok}")
    STB = 32 * SPS * PITCH
    TSTEP = SPS * 2048
    pro = []
    pro.append(Op(f"s_mov_b32 s{sW}, 0"))
    for st in range(R - 1):
        for k in range(NDMA): pro += dma_ops((lambda it, st=st, k=k: ('W', st, k)), st, k)
        if st < DT:
            pro.append(Op(f"s_mov_b32 s{sT}, {st*TSTEP}"))
            for ks in range(SPS):
                if st == DT - 1 and ks == SPS - 1: continue
                for j in range(NT):
                    pro.append(tok_op(st, ks, j, (lambda it, st=st, ks=ks, j=j: ('T', st, ks, j))))
        if st == 0: pro += gb_load
        pro.append(Op(f"s_add_u32 s{sW}, s{sW}, {STB}"))
    pro += x_load
    for r in range(nacc): pro.append(Op(f"v_mov_b32 v{ACC0+r}, 0"))
    pro += gb_proc
    for P in range(2): pass
    pro.append(Op(f"s_mov_b32 s{sCnt}, 0"))
    pro.append(Op(wait_vm=lambda it: [('W', 0, k) for k in range(NDMA)]))
    pro.append(Op("s_barrier"))
    def rd_ops(buf, slot, ks):
        return [Op(f"ds_read_b64_tr_b16 {v(WF[buf][T]+2*q,2)}, v{vRd[T]} offset:{slot*SLOT + ks*32*ROWB + q*4*ROWB}") for T in range(NN) for q in range(2)]
    pro += rd_ops(0, 0, 0)
    body = []
    for st in range(U):
        for ks in range(SPS):
            cur = (st * SPS + ks) & 1
            nst, nks = (st, ks + 1) if ks < SPS - 1 else (st + 1, 0)
            pst, pks = (st, ks - 1) if ks > 0 else (st - 1, SPS - 1)
            tk = [tok_op((pst % DT), pks, j, (lambda it, pst=pst, pks=pks, j=j: ('T', it * U + pst + DT, pks, j))) for j in range(NT)]
            tkinc = [Op(f"s_add_u32 s{sT}, s{sT}, {TSTEP}")] if ks == 0 else []
            dm = [dma_ops((lambda it, st=st, k=k: ('W', it * U + st + R - 1, k)), (st + R - 1) % R, k) for k in range(NDMA) if k * SPS // NDMA == ks]
            dmend = [Op(f"s_add_u32 s{sW}, s{sW}, {STB}")] if ks == SPS - 1 else []
            rd = rd_ops(cur ^ 1, nst % R, nks)
            head = [Op("s_waitcnt lgkmcnt(0)"), Op(wait_vm=lambda it, st=st, ks=ks: [('T', it * U + st, ks, j) for j in range(NT)])]
            mf = []
            for T in range(NN):
                for j in range(NT):
                    if nomfma: mf.append(Op("s_nop 0"))
                    else: mf.append(Op(f"v_mfma_f32_16x16x32_bf16 {v(acc(T,j),4)}, {v(WF[cur][T],4)}, {v(TF[st%DT][ks][j],4)}, {v(acc(T,j),4)}"))
            nm = len(mf)
            gaps = [[] for _ in range(nm)]
            if ks == SPS - 1:
                gaps[0] += [Op(wait_vm=lambda it, st=st: [('W', it * U + st + 1, k) for k in range(NDMA)]), Op("s_barrier")]
            for i, o in enumerate(rd): gaps[min(i // 2, nm - 1)].append(o)
            gaps[4] += [tk[0]]; gaps[5] += [tk[1]] + tkinc
            for i, d in enumerate(dm): gaps[min(6 + i, nm - 1)] += d
            gaps[nm - 1] += dmend
            body += head
            for g in range(nm):
                body.append(mf[g]); body += gaps[g]
    body.append(Op(f"s_add_u32 s{sCnt}, s{sCnt}, 1"))
    body.append(Op(f"s_cmp_lt_u32 s{sCnt}, {NST//U}"))
    pl, bl, _ = resolve(pro, body, NST // U)
    for l in pl: A(l)
    ST.mark()
    A(".p2align 6")
    A.label(f"{name}_loop")
    for l in bl: A(l)
    A(f"s_cbranch_scc1 {name}_loop")
    ST.mark(8)
    A(f"v_lshrrev_b32 v22, 4, v{vLane}")
    A(f"v_and_b32 v23, 1, v22")
    A(f"v_lshlrev_b32 v23, 6, v23")
    A(f"v_lshrrev_b32 v22, 1, v22")
    A(f"v_lshl_add_u32 v23, v22, 5, v23")
    A(f"v_add_u32 v23, {LDS_GB}, v23")
    for P in range(2):
        A(f"ds_read_b128 {v(GB+8*P,4)}, v23 offset:{P*128}")
        A(f"ds_read_b128 {v(GB+8*P+4,4)}, v23 offset:{P*128+16}")
    A.nop(2)
    for j in range(NT):
        for P in range(2):
            for r in range(4):
                A(f"v_permlane16_swap_b32 v{acc(2*P,j)+r}, v{acc(2*P+1,j)+r}")
    A("s_waitcnt lgkmcnt(0)")
    T0 = 24
    for j in range(NT):
        for P in range(2):
            a0, a1 = acc(2 * P, j), acc(2 * P + 1, j)
            vals = [a0 + r for r in range(4)] + [a1 + r for r in range(4)]
            x = XR + 4 * (j * 2 + P)
            for i in range(4):
                A(f"v_lshlrev_b32 v{T0+i}, 16, v{x+i}")
                A(f"v_and_b32 v{x+i}, 0xffff0000, v{x+i}")
            for i in range(4):
                A(f"v_fma_f32 v{vals[2*i]}, v{vals[2*i]}, v{GB+8*P+2*i}, v{T0+i}")
                A(f"v_fma_f32 v{vals[2*i+1]}, v{vals[2*i+1]}, v{GB+8*P+2*i+1}, v{x+i}")
            for i in range(4): A(f"v_cvt_pk_bf16_f32 v{x+i}, v{vals[2*i]}, v{vals[2*i+1]}")
            A(f"buffer_store_dwordx4 {v(x,4)}, v{vOut[j]}, s[{sOsrd}:{sOsrd+3}], 0 offen offset:{P*64}{SF}")
    ST.dump(f"{name}_end")
    if not stamp: A.label(f"{name}_end")
    A("s_endpgm")
    errs = check_hazards(A.lines + bl, name)
    for e in errs: print("HAZARD", e)
    lds = R * SLOT + 512
    text = kernel_header(name) + A.text()
    desc = kernel_desc(name, nvgpr, 102, accum_offset)
    launch = f"; @launch kernel={name} grid=(256,1,1) block=({NW*64},1,1) lds={lds}"
    return text, desc, launch
```

```python
from asmlib import *
from common import *
import os
SF = os.environ.get('SF_L1', '')
from k_small import *
from stamp import Stamper
from k_gemv import *

def allreduce2(A, r0, r1, t0, t1):
    allreduce64(A, [r0, r1], [t0, t1])

def ln_stats(A, F, n, S, T, sC, inv_n):
    A(f"v_pk_add_f32 {v(S,2)}, {v(F,2)}, {v(F+2,2)}")
    A(f"v_pk_mul_f32 {v(S+2,2)}, {v(F,2)}, {v(F,2)}")
    A(f"v_pk_fma_f32 {v(S+2,2)}, {v(F+2,2)}, {v(F+2,2)}, {v(S+2,2)}")
    for i in range(4, n, 2):
        A(f"v_pk_add_f32 {v(S,2)}, {v(S,2)}, {v(F+i,2)}")
        A(f"v_pk_fma_f32 {v(S+2,2)}, {v(F+i,2)}, {v(F+i,2)}, {v(S+2,2)}")
    A(f"v_add_f32 v{S}, v{S}, v{S+1}")
    A(f"v_add_f32 v{S+1}, v{S+2}, v{S+3}")
    A.nop(1)
    allreduce64(A, [S, S + 1], [S + 2, S + 3])
    A(f"v_mul_f32 v{S}, {inv_n}, v{S}")
    A(f"v_mul_f32 v{S+1}, {inv_n}, v{S+1}")
    A(f"v_fma_f32 v{S+1}, -v{S}, v{S}, v{S+1}")
    A(f"v_max_f32 v{S+1}, 0, v{S+1}")
    A(f"v_add_f32 v{S}, s{sC}, v{S}")
    round_bf16(A, S + 1, S + 1)
    round_bf16(A, S, S)
    A(f"v_add_f32 v{S+1}, {hex(f32_bits(1e-5))}, v{S+1}")
    A(f"v_sub_f32 v{S}, s{sC}, v{S}")
    round_bf16(A, S + 1, S + 1)
    A(f"v_sqrt_f32 v{S+1}, v{S+1}")
    A(f"v_mov_b32 v{S+2}, v{S}")
    round_bf16(A, S + 1, S + 1) if False else None
    A(f"v_cvt_pk_bf16_f32 v{S+1}, v{S+1}, v{S+1}")
    A(f"v_and_b32 v{S+1}, 0xffff0000, v{S+1}")
    A(f"v_rcp_f32 v{S+4}, v{S+1}")
    A(f"v_mov_b32 v{S+3}, v{S}")
    A(f"v_mov_b32 v{S+5}, v{S+4}")
    return S + 2, S + 4

def gen_l1(name="l1_kernel", stamp=False, code_range=None, pf_stride=64, wcopy=True):
    A = Asm()
    ST = Stamper(A, 0, stamp, vtmp=60)
    ST.mark()
    vX = 8; vF = 16; vS = 32; vP = 40
    sX, sC, sWm, sWs = 4, 8, 10, 6
    sWv = 12
    PITCH = 2080
    LDS_X = 0
    lds = 18432 + 256
    NWG = 768 if wcopy else 512
    A(f"s_cmp_ge_u32 s2, {NWG}")
    A(f"s_cbranch_scc1 {name}_end")
    A(f"s_load_dwordx2 s[26:27], s[0:1], {KARG['wd']}")
    A(f"s_load_dwordx2 s[{sX}:{sX+1}], s[0:1], {KARG['x']}")
    A(f"s_load_dwordx4 s[{sC}:{sC+3}], s[0:1], {KARG['c']}")
    A(f"s_load_dwordx2 s[{sWs}:{sWs+1}], s[0:1], {KARG['ws']}")
    A(f"v_lshrrev_b32 v1, 6, v0")
    A(f"v_and_b32 v2, 63, v0")
    A(f"v_readfirstlane_b32 s{sWv}, v1")
    A(f"s_and_b32 s13, s2, 7")
    if wcopy:
        A(f"s_cmp_ge_u32 s2, 512")
        A(f"s_cbranch_scc1 {name}_copy")
    A(f"s_cmp_ge_u32 s2, 256")
    A(f"s_cbranch_scc1 {name}_gemv")
    A(f"s_lshr_b32 s14, s2, 3")
    A(f"s_and_b32 s15, s14, 7")
    A(f"s_lshl_b32 s16, s13, 3")
    A(f"s_add_u32 s15, s15, s16")
    A(f"s_lshr_b32 s16, s14, 3")
    A(f"s_lshl_b32 s17, s16, 3")
    A(f"s_add_u32 s17, s17, s{sWv}")
    A(f"s_lshl_b32 s17, s17, 6")
    A(f"s_add_u32 s17, s17, s15")
    A(f"s_lshl_b32 s17, s17, 11")
    A(f"v_lshlrev_b32 v3, 4, v2")
    A(f"v_add_u32 v4, s17, v3")
    A("s_waitcnt lgkmcnt(0)")
    ST.mark()
    A(f"global_load_dwordx4 {v(vX,4)}, v4, s[{sX}:{sX+1}]")
    A(f"global_load_dwordx4 {v(vX+4,4)}, v4, s[{sX}:{sX+1}] offset:1024")
    A(f"s_mul_i32 s18, s{sWv}, {PITCH}")
    A(f"v_add_u32 v5, s18, v3")
    A(f"v_bfe_u32 v6, v2, 4, 1")
    A(f"v_lshlrev_b32 v6, 1, v6")
    A(f"v_lshrrev_b32 v7, 5, v2")
    A(f"v_add_u32 v6, v6, v7")
    A(f"v_bfe_u32 v7, v2, 2, 2")
    A(f"v_mul_u32_u24 v7, {PITCH}, v7")
    A(f"v_lshl_add_u32 v7, v6, 6, v7")
    A(f"v_and_b32 v3, 3, v2")
    A(f"v_lshl_add_u32 v7, v3, 3, v7")
    A(f"s_lshl_b32 s18, s{sWv}, 8")
    A(f"v_add_u32 v7, s18, v7")
    A(f"v_and_b32 v3, 15, v2")
    A(f"v_lshlrev_b32 v3, 14, v3")
    A(f"v_lshl_add_u32 v3, v6, 4, v3")
    A(f"s_lshl_b32 s18, s{sWv}, 19")
    A(f"s_lshr_b32 s20, s15, 3"); A(f"s_lshl_b32 s20, s20, 11"); A(f"s_add_u32 s18, s18, s20")
    A(f"s_lshr_b32 s20, s16, 1"); A(f"s_lshl_b32 s20, s20, 10"); A(f"s_add_u32 s18, s18, s20")
    A(f"s_and_b32 s20, s16, 1"); A(f"s_lshl_b32 s20, s20, 9"); A(f"s_add_u32 s18, s18, s20")
    A(f"s_and_b32 s20, s15, 7"); A(f"s_lshl_b32 s20, s20, 6"); A(f"s_add_u32 s18, s18, s20")
    A(f"s_add_u32 s18, s18, {WS_XNF}")
    A(f"v_add_u32 v3, s18, v3")
    A("s_waitcnt vmcnt(0)")
    ST.mark()
    A(f"v_lshlrev_b32 v{vF}, 16, v{vX}")
    A.nop(1)
    A(f"v_readfirstlane_b32 s21, v{vF}")
    for i in range(8):
        if i > 0: A(f"v_lshlrev_b32 v{vF+2*i}, 16, v{vX+i}")
        A(f"v_and_b32 v{vF+2*i+1}, 0xffff0000, v{vX+i}")
    for i in range(16): A(f"v_subrev_f32 v{vF+i}, s21, v{vF+i}")
    ST.mark()
    cm, rinv = ln_stats(A, vF, 16, vS, None, 21, hex(f32_bits(1.0 / 1024)))
    ST.mark()
    for i in range(8): A(f"v_pk_add_f32 {v(vF+2*i,2)}, {v(vF+2*i,2)}, {v(cm,2)}")
    for i in range(8): A(f"v_cvt_pk_bf16_f32 v{vP+i}, v{vF+2*i}, v{vF+2*i+1}")
    for i in range(8):
        A(f"v_lshlrev_b32 v{vF+2*i}, 16, v{vP+i}")
        A(f"v_and_b32 v{vF+2*i+1}, 0xffff0000, v{vP+i}")
    for i in range(8): A(f"v_pk_mul_f32 {v(vF+2*i,2)}, {v(vF+2*i,2)}, {v(rinv,2)}")
    for i in range(8): A(f"v_cvt_pk_bf16_f32 v{vP+i}, v{vF+2*i}, v{vF+2*i+1}")
    ST.mark()
    A(f"ds_write_b128 v5, {v(vP,4)} offset:{LDS_X}")
    A(f"ds_write_b128 v5, {v(vP+4,4)} offset:{LDS_X+1024}")
    A("s_waitcnt lgkmcnt(0)")
    ST.mark()
    A("s_barrier")
    ST.mark()
    for half in range(2):
        for q in range(2):
            A(f"ds_read_b64_tr_b16 {v(vF+4*half+2*q,2)}, v7 offset:{LDS_X + q*4*PITCH + half*32}")
    for half in range(2):
        A(f"s_waitcnt lgkmcnt({2-2*half})")
        A(f"global_store_dwordx4 v3, {v(vF+4*half,4)}, s[{sWs}:{sWs+1}]{SF}")
        if half == 0: A(f"v_add_u32 v3, {16*16384}, v3")
    ST.mark()
    A(f"s_branch {name}_fin")
    A.label(f"{name}_gemv")
    A(f"s_and_b32 s18, s2, 31")
    A(f"s_lshr_b32 s19, s2, 5")
    A(f"s_and_b32 s19, s19, 7")
    ctx = gemv64x128(A, name, sWs, sC, sWm, sWv, 18, 19, 0, WS_MODP1, 0)
    if code_range is not None:
        lo, hi = code_range
        A(f"s_getpc_b64 s[22:23]")
        A.label(f"{name}_pc")
        A(f"s_add_u32 s22, s22, {lo}-{name}_pc")
        A(f"s_addc_u32 s23, s23, 0")
        A(f"s_lshr_b32 s20, s2, 3")
        A(f"s_and_b32 s20, s20, 31")
        A(f"s_lshl_b32 s20, s20, 9")
        A(f"v_add_u32 v8, s20, v0")
        A(f"v_lshlrev_b32 v8, 6, v8")
        A(f"v_mov_b32 v9, {hi}-{lo}")
        A(f"v_cmp_lt_u32 vcc, v8, v9")
        A(f"s_and_saveexec_b64 s[24:25], vcc")
        A(f"s_cbranch_execz {name}_nopf")
        A(f"global_load_dword v10, v8, s[22:23]")
        A.label(f"{name}_nopf")
        A(f"s_mov_b64 exec, s[24:25]")
    A("s_waitcnt vmcnt(0)")
    gemv64x128_fin(A, name, ctx, sWs, sWv, 18, 19, WS_MODP1)
    if wcopy:
        A(f"s_branch {name}_fin")
        A.label(f"{name}_copy")
        A(f"s_sub_u32 s13, s2, 512")
        A(f"s_mul_i32 s14, s13, 28672")
        A(f"v_lshlrev_b32 v3, 4, v2")
        A(f"s_lshl_b32 s15, s{sWv}, 10")
        A(f"s_add_u32 s14, s14, s15")
        A(f"v_add_u32 v3, s14, v3")
        A(f"v_lshrrev_b32 v4, 3, v2")
        A(f"s_mov_b32 s15, 458752")
        A(f"v_mul_lo_u32 v4, v4, s15")
        A(f"v_and_b32 v5, 7, v2")
        A(f"v_lshl_add_u32 v4, v5, 4, v4")
        A(f"s_mul_i32 s14, s13, {14*128}")
        A(f"s_add_u32 s14, s14, {WS_WDT}")
        A(f"s_and_b32 s15, s{sWv}, 1")
        A(f"s_mul_i32 s15, s15, {8*458752}")
        A(f"s_add_u32 s14, s14, s15")
        A(f"s_lshr_b32 s15, s{sWv}, 1")
        A(f"s_lshl_b32 s15, s15, 7")
        A(f"s_add_u32 s14, s14, s15")
        A(f"v_add_u32 v4, s14, v4")
        A("s_waitcnt lgkmcnt(0)")
        A(f"s_cmp_lt_u32 s{sWv}, 4")
        A(f"s_cselect_b32 s16, 1, 0")
        for i in range(3):
            A(f"global_load_dwordx4 {v(8+4*i,4)}, v3, s[26:27]")
            A(f"v_add_u32 v3, 8192, v3")
        A(f"s_cmp_eq_u32 s16, 0")
        A(f"s_cbranch_scc1 {name}_c3")
        A(f"global_load_dwordx4 {v(20,4)}, v3, s[26:27]")
        A("s_waitcnt vmcnt(0)")
        A(f"v_add_u32 v5, {3*4*128}, v4")
        A(f"global_store_dwordx4 v5, {v(20,4)}, s[{sWs}:{sWs+1}]")
        A.label(f"{name}_c3")
        A("s_waitcnt vmcnt(0)") if False else None
        A(f"s_cmp_eq_u32 s16, 0")
        A(f"s_cbranch_scc0 {name}_c4")
        A("s_waitcnt vmcnt(0)")
        A.label(f"{name}_c4")
        for i in range(3):
            A(f"global_store_dwordx4 v4, {v(8+4*i,4)}, s[{sWs}:{sWs+1}]")
            if i < 2: A(f"v_add_u32 v4, {4*128}, v4")
    A.label(f"{name}_fin")
    ST.dump(f"{name}_end")
    if not stamp: A.label(f"{name}_end")
    A("s_endpgm")
    for e in check_hazards(A.lines, name): print("HAZARD", e)
    return (kernel_header(name) + A.text(), kernel_desc(name, 64, 96, 64),
            f"; @launch kernel={name} grid=({NWG},1,1) block=(512,1,1) lds={lds}")
```

```python
from asmlib import *
from common import *
import os
SF = os.environ.get('SF_L3', '')
from k_small import *
from k_l1 import ln_stats
from stamp import Stamper
from k_gemv import *
from k_l2 import table_dma

def gen_l3(name="l3_kernel", stamp=False, pf_rows=256, special_first=False):
    A = Asm()
    ST = Stamper(A, 2, stamp, vtmp=8, two=True)
    ST.mark()
    vZ = 8
    vW4 = 24
    vW5 = 24
    vT = 40
    vS = 48
    vDum = 55
    vD = 56
    vE = 56
    vTw = 88
    vX = 120
    vP = 56
    vL16 = 0
    sWs, sX = 6, 4
    sTab = 24
    sWv = 12
    MODB = 5120
    LDS_TAB = 0
    LDS_MOD = 12288
    LDS_T = LDS_MOD + 3 * MODB
    LDS_Y = LDS_T + 5 * 4608
    YB = 3072
    LDS_Z = LDS_Y + 5 * YB
    lds = LDS_Z + 16384
    LDS_H = LDS_T
    HP = 2080
    NWG = 256
    A(f"s_cmp_ge_u32 s2, {NWG}")
    A(f"s_cbranch_scc1 {name}_end")
    if special_first:
        A(f"s_sub_u32 s3, s2, 1")
        A(f"s_cmp_eq_u32 s2, 0")
        A(f"s_cselect_b32 s2, 256, s3")
    A(f"s_load_dwordx2 s[{sWs}:{sWs+1}], s[0:1], {KARG['ws']}")
    A(f"s_load_dwordx2 s[{sX}:{sX+1}], s[0:1], {KARG['x']}")
    A(f"s_load_dwordx4 s[28:31], s[0:1], {KARG['wg']}")
    A(f"s_getpc_b64 s[{sTab}:{sTab+1}]")
    A.label(f"{name}_pc")
    A(f"s_add_u32 s{sTab}, s{sTab}, tab_W4-{name}_pc")
    A(f"s_addc_u32 s{sTab+1}, s{sTab+1}, 0")
    A(f"v_lshrrev_b32 v1, 6, v0")
    A(f"v_and_b32 v2, 63, v0")
    A(f"v_readfirstlane_b32 s{sWv}, v1")
    A(f"v_lshlrev_b32 v3, 4, v2")
    A(f"s_cmp_eq_u32 s{sWv}, 8")
    A(f"s_cbranch_scc0 {name}_notw8")
    A(f"s_cmp_eq_u32 s2, 0")
    A(f"s_cbranch_scc0 {name}_end")
    A(f"v_lshrrev_b32 v6, 5, v2")
    A(f"v_and_b32 v7, 31, v2")
    A(f"v_lshlrev_b32 v5, 6, v7")
    A(f"v_lshl_add_u32 v5, v6, 5, v5")
    A(f"s_mov_b32 s13, 1024")
    A(f"s_mov_b32 s14, 1")
    A(f"s_mov_b32 s45, 0")
    A(f"v_mul_u32_u24 v4, {ZCH}, v2")
    A(f"v_add_u32 v4, {WS_ZF + 1024*16}, v4")
    A("s_waitcnt lgkmcnt(0)")
    for kt in range(4):
        A(f"global_load_dwordx4 {v(vZ+4*kt,4)}, v4, s[{sWs}:{sWs+1}]")
        if kt < 3: A(f"v_add_u32 v4, {64*ZCH}, v4")
    A(f"s_mov_b32 s47, 4")
    A(f"s_branch {name}_rolea")
    A.label(f"{name}_notw8")
    nt = table_dma(A, sTab, sWv, 12, 8, LDS_TAB, 3, 4)
    A(f"v_lshrrev_b32 v6, 5, v2")
    A(f"v_and_b32 v7, 31, v2")
    A(f"v_lshlrev_b32 v5, 6, v7")
    A(f"v_lshl_add_u32 v5, v6, 5, v5")
    A(f"s_and_b32 s13, s2, 7")
    A(f"s_lshl_b32 s13, s13, 5")
    A(f"s_lshr_b32 s14, s2, 3")
    A(f"s_add_u32 s13, s13, s14")
    A(f"s_cmp_eq_u32 s2, 256")
    A(f"s_cselect_b32 s13, 256, s13")
    A(f"s_lshl_b32 s13, s13, 2")
    A(f"s_mov_b32 s45, s13")
    A(f"s_and_b32 s17, s{sWv}, 3")
    A(f"s_add_u32 s13, s13, s17")
    A(f"s_cmp_le_u32 s13, 1024")
    A(f"s_cselect_b32 s14, 1, 0")
    A(f"s_min_u32 s13, s13, 1024")
    A(f"v_lshrrev_b32 v4, 2, v2")
    A(f"s_lshl_b32 s18, s{sWv}, 5")
    A(f"v_add_u32 v4, s18, v4")
    A(f"v_mul_u32_u24 v4, {ZCH}, v4")
    A(f"v_lshrrev_b32 v1, 2, v2")
    A(f"v_xor_b32 v1, v1, v2")
    A(f"v_and_b32 v1, 3, v1")
    A(f"v_lshl_add_u32 v4, v1, 4, v4")
    A(f"s_and_b32 s17, s{sWv}, 3")
    A(f"s_sub_u32 s18, s44, s17") if False else None
    A(f"s_lshl_b32 s18, s45, 4")
    A(f"s_add_u32 s18, s18, {WS_ZF}")
    A(f"v_add_u32 v4, s18, v4")
    A(f"s_lshl_b32 s18, s{sWv}, 11")
    A("s_waitcnt lgkmcnt(0)")
    ST.mark(1)
    A(f"s_add_u32 m0, s18, {LDS_Z}")
    A("s_nop 0")
    A(f"global_load_lds_dwordx4 v4, s[{sWs}:{sWs+1}]")
    A(f"s_add_u32 m0, s18, {LDS_Z + 1024}")
    A(f"v_add_u32 v4, {16*ZCH}, v4")
    A(f"global_load_lds_dwordx4 v4, s[{sWs}:{sWs+1}]")
    A(f"s_mov_b32 s47, s{sWv}")
    A(f"s_cmp_ge_u32 s{sWv}, 4")
    A(f"s_cbranch_scc1 {name}_roleb")
    A.label(f"{name}_rolea")
    A(f"s_lshl_b32 s17, s13, 11")
    A(f"v_add_u32 v{vE+3}, s17, v5")
    A(f"v_mov_b32 v{vL16}, v3")
    A(f"global_load_dwordx4 {v(vX,4)}, v{vE+3}, s[{sX}:{sX+1}]")
    A(f"global_load_dwordx4 {v(vX+4,4)}, v{vE+3}, s[{sX}:{sX+1}] offset:16")
    A(f"v_cvt_f32_u32 v{vE}, v7")
    A(f"v_mul_f32 v{vE}, {hex(f32_bits(1.0/1024))}, v{vE}")
    A(f"v_cvt_f32_u32 v{vE+1}, v6")
    A(f"v_mul_f32 v{vE+1}, v{vE+1}, v{vE}")
    A(f"v_mul_f32 v{vE+1}, 0x41000000, v{vE+1}")
    for i in range(16):
        A(f"v_fmamk_f32 v{vTw+2*i}, v{vE}, {hex(f32_bits(float(16*(i>>3)+(i&7))))}, v{vE+1}")
    for i in range(16):
        A(f"v_sin_f32 v{vTw+2*i+1}, v{vTw+2*i}")
        A(f"v_cos_f32 v{vTw+2*i}, v{vTw+2*i}")
    A(f"s_mul_i32 s17, s47, 4608")
    A(f"s_add_u32 s17, s17, {LDS_T}")
    A(f"v_mul_u32_u24 v{vE}, {8*144}, v6")
    A(f"v_lshl_add_u32 v{vE}, v7, 2, v{vE}")
    A(f"v_add_u32 v3, s17, v{vE}")
    A(f"v_bfe_u32 v{vE}, v7, 2, 1")
    A(f"v_lshlrev_b32 v{vE}, 4, v{vE}")
    A(f"v_lshrrev_b32 v{vE+1}, 3, v7")
    A(f"v_lshl_add_u32 v{vE}, v{vE+1}, 2, v{vE}")
    A(f"v_and_b32 v{vE+1}, 3, v7")
    A(f"v_add_u32 v{vE}, v{vE}, v{vE+1}")
    A(f"v_mul_u32_u24 v{vE}, 144, v{vE}")
    A(f"v_lshl_add_u32 v{vE}, v6, 4, v{vE}")
    A(f"v_add_u32 v4, s17, v{vE}")
    A(f"v_lshl_add_u32 v1, v7, 1, v6")
    A(f"v_mul_u32_u24 v1, 80, v1")
    A(f"s_and_b32 s17, s{sWv}, 3")
    A(f"v_xor_b32 v{vE}, s17, v2")
    A(f"v_and_b32 v{vE}, 3, v{vE}")
    A(f"v_lshlrev_b32 v{vE}, 4, v{vE}")
    A(f"v_lshl_add_u32 v{vE}, v2, 6, v{vE}")
    A(f"v_add_u32 v{vE}, {LDS_Z}, v{vE}")
    ST.mark(2)
    A("s_waitcnt vmcnt(2)")
    ST.mark(3)
    A("s_barrier")
    ST.mark(4)
    A(f"s_cmp_eq_u32 s{sWv}, 8")
    A(f"s_cbranch_scc1 {name}_nozr")
    for kt in range(4):
        A(f"ds_read_b128 {v(vZ+4*kt,4)}, v{vE} offset:{kt*4096}")
    A.label(f"{name}_nozr")
    for f in range(8):
        A(f"ds_read_b128 {v(vW4+4*f,4)}, v{vL16} offset:{LDS_TAB + f*1024}")
    A("s_waitcnt lgkmcnt(0)")
    ST.mark(5)
    for kt in range(4):
        for mt in range(2):
            cin = "0" if kt == 0 else v(vD + 16 * mt, 16)
            A(f"v_mfma_f32_32x32x16_bf16 {v(vD+16*mt,16)}, {v(vW4+16*mt+4*kt,4)}, {v(vZ+4*kt,4)}, {cin}")
    A.nop(6)
    for f in range(4):
        A(f"ds_read_b128 {v(vW5+4*f,4)}, v{vL16} offset:{LDS_TAB + 8192 + f*1024}")
    A.nop(2)
    for mt in range(2):
        for q in range(8):
            i = mt * 8 + q
            d = vD + 16 * mt + 2 * q
            t = vZ + 2 * (q & 3)
            A(f"v_pk_mul_f32 {v(t,2)}, {v(d,2)}, {v(vTw+2*i,2)} op_sel:[0,0] op_sel_hi:[1,0]")
            A(f"v_pk_fma_f32 {v(t,2)}, {v(d,2)}, {v(vTw+2*i,2)}, {v(t,2)} op_sel:[1,1,0] op_sel_hi:[0,1,1] neg_hi:[1,0,0]")
            A(f"v_cvt_pk_bf16_f32 v{t}, v{t}, v{t+1}")
            A(f"ds_write_b32 v3, v{t} offset:{(16*mt+q)*144}")
    A("s_waitcnt lgkmcnt(0)")
    for kt in range(4):
        A(f"ds_read_b128 {v(vTw+4*kt,4)}, v4 offset:{kt*32}")
    for kt in range(4):
        A(f"s_waitcnt lgkmcnt({3-kt})")
        cin = "0" if kt == 0 else v(vD, 16)
        A(f"v_mfma_f32_32x32x16_bf16 {v(vD,16)}, {v(vTw+4*kt,4)}, {v(vW5+4*kt,4)}, {cin}")
    A(f"s_mul_i32 s17, s47, {YB}")
    A(f"s_add_u32 s17, s17, {LDS_Y}")
    A(f"v_lshl_add_u32 v3, v7, 1, v6")
    A(f"v_mul_u32_u24 v3, 48, v3")
    A(f"v_add_u32 v3, s17, v3")
    A.nop(10)
    for i in range(8): A(f"v_cvt_pk_bf16_f32 v{vT+i}, v{vD+2*i}, v{vD+2*i+1}")
    A(f"ds_write_b128 v3, {v(vT,4)}")
    A(f"ds_write_b128 v3, {v(vT+4,4)} offset:16")
    for i in range(8):
        A(f"v_lshlrev_b32 v{vD+2*i}, 16, v{vT+i}")
        A(f"v_and_b32 v{vD+2*i+1}, 0xffff0000, v{vT+i}")
    A("s_waitcnt lgkmcnt(0)")
    ST.mark(6)
    A("s_barrier")
    ST.mark(7)
    A(f"s_mov_b32 s15, s13")
    A(f"s_mov_b32 s16, s14")
    A("s_waitcnt vmcnt(0)")
    A(f"s_branch {name}_row")
    A.label(f"{name}_roleb")
    A(f"v_subrev_u32 v3, 256, v0")
    A(f"v_lshlrev_b32 v4, 4, v3")
    A(f"v_add_u32 v4, {WS_MODP2}, v4")
    A(f"s_sub_u32 s15, 2048, s13")
    A(f"s_and_b32 s15, s15, 2047")
    A(f"s_and_b32 s16, s13, 1023")
    A(f"s_cmp_lg_u32 s16, 0")
    A(f"s_cselect_b32 s16, s14, 0")
    A(f"s_lshl_b32 s17, s15, 11")
    A(f"v_add_u32 v1, s17, v5")
    for p in range(2):
        for vv in range(3):
            A(f"v_add_u32 v{vT}, {vv*4096 + p*16384}, v4")
            A(f"global_load_dwordx4 {v(vP+12*p+4*vv,4)}, v{vT}, s[{sWs}:{sWs+1}]")
    A(f"global_load_dwordx4 {v(vX,4)}, v1, s[{sX}:{sX+1}]")
    A(f"global_load_dwordx4 {v(vX+4,4)}, v1, s[{sX}:{sX+1}] offset:16")
    ST.mark(2)
    A(f"s_waitcnt vmcnt(8)")
    ST.mark(3)
    A("s_barrier")
    ST.mark(4)
    npf = 0
    if pf_rows:
        rpw = pf_rows // 32 // 2
        nin = (rpw + 7) // 8
        A(f"s_and_b32 s40, s2, 7")
        A(f"s_mul_i32 s40, s40, 896")
        A(f"s_lshr_b32 s41, s2, 3")
        A(f"s_min_u32 s41, s41, 31")
        A(f"s_lshl_b32 s41, s41, 1")
        A(f"s_and_b32 s42, s{sWv}, 1")
        A(f"s_add_u32 s41, s41, s42")
        A(f"s_mul_i32 s41, s41, {rpw*7168}")
        A(f"s_add_u32 s40, s40, s41")
        A(f"s_bitcmp1_b32 s{sWv}, 1")
        A(f"s_cselect_b32 s42, s30, s28")
        A(f"s_cselect_b32 s43, s31, s29")
        A(f"v_lshrrev_b32 v{vT}, 3, v2")
        A(f"v_min_u32 v{vT}, {min(rpw,8)-1}, v{vT}")
        A(f"v_mul_u32_u24 v{vT}, 7168, v{vT}")
        A(f"v_and_b32 v{vT+1}, 7, v2")
        A(f"v_min_u32 v{vT+1}, 6, v{vT+1}")
        A(f"v_lshl_add_u32 v{vT}, v{vT+1}, 7, v{vT}")
        A(f"v_add_u32 v{vT}, s40, v{vT}")
        for i in range(nin):
            A(f"global_load_dword v{vDum}, v{vT}, s[42:43]")
            if i < nin - 1: A(f"v_add_u32 v{vT}, {8*7168}, v{vT}")
        npf = nin
    A(f"s_waitcnt vmcnt({2+npf})")
    ST.mark(5)
    for i in range(12): A(f"v_add_f32 v{vP+i}, v{vP+i}, v{vP+12+i}")
    for i in range(12): round_bf16(A, vP + i, vP + i)
    for i in range(4):
        A(f"v_add_f32 v{vP+8+i}, 1.0, v{vP+8+i}")
        round_bf16(A, vP + 8 + i, vP + 8 + i)
    A(f"v_lshrrev_b32 v4, 2, v3")
    A(f"v_mul_u32_u24 v4, 80, v4")
    A(f"v_and_b32 v{vT+1}, 3, v3")
    A(f"v_lshl_add_u32 v4, v{vT+1}, 4, v4")
    for vv in range(3):
        A(f"ds_write_b128 v4, {v(vP+4*vv,4)} offset:{LDS_MOD + vv*MODB}")
    A(f"v_lshl_add_u32 v1, v7, 1, v6")
    A(f"s_and_b32 s17, s{sWv}, 3")
    A(f"s_mul_i32 s17, s17, {YB}")
    A(f"s_add_u32 s17, s17, {LDS_Y}")
    A(f"v_sub_u32 v3, 63, v1")
    A(f"v_mul_u32_u24 v3, 48, v3")
    A(f"v_add_u32 v3, s17, v3")
    A(f"v_sub_u32 v4, 64, v1")
    A(f"v_and_b32 v4, 63, v4")
    A(f"v_mul_u32_u24 v4, 48, v4")
    A(f"v_add_u32 v4, s17, v4")
    A(f"v_mul_u32_u24 v1, 80, v1")
    A("s_waitcnt lgkmcnt(0)")
    ST.mark(6)
    A("s_barrier")
    ST.mark(7)
    YT = vD + 16
    A(f"ds_read_b128 {v(YT,4)}, v3")
    A(f"ds_read_b128 {v(YT+4,4)}, v3 offset:16")
    A(f"ds_read_b32 v{vD}, v4")
    A(f"s_waitcnt vmcnt({npf}) lgkmcnt(0)")
    A(f"v_lshlrev_b32 v{vD}, 16, v{vD}")
    for k in range(8):
        if k > 0: A(f"v_lshlrev_b32 v{vD+16-2*k}, 16, v{YT+k}")
        A(f"v_and_b32 v{vD+16-(2*k+1)}, 0xffff0000, v{YT+k}")
    A.label(f"{name}_row")
    A(f"s_lshl_b32 s46, s45, 1")
    A(f"s_add_u32 s46, s46, s47")
    A(f"s_cmp_eq_u32 s16, 0")
    A(f"s_cbranch_scc1 {name}_stage")
    GA, CB, SB = vTw, vTw + 16, vZ
    for base, vec in ((GA, 0), (CB, 2), (SB, 1)):
        for qd in range(4):
            A(f"ds_read_b128 {v(base+4*qd,4)}, v1 offset:{LDS_MOD + vec*MODB + qd*16}")
    Y = vD; PK = vT; S = vS; XF = vD + 16
    def rnd(dst_pk):
        for i in range(8): A(f"v_cvt_pk_bf16_f32 v{dst_pk+i}, v{Y+2*i}, v{Y+2*i+1}")
    def unp(src_pk):
        for i in range(8):
            A(f"v_lshlrev_b32 v{Y+2*i}, 16, v{src_pk+i}")
            A(f"v_and_b32 v{Y+2*i+1}, 0xffff0000, v{src_pk+i}")
    for i in range(8):
        A(f"v_lshlrev_b32 v{XF+2*i}, 16, v{vX+i}")
        A(f"v_and_b32 v{XF+2*i+1}, 0xffff0000, v{vX+i}")
    A("s_waitcnt lgkmcnt(8)")
    for i in range(8): A(f"v_pk_fma_f32 {v(Y+2*i,2)}, {v(Y+2*i,2)}, {v(GA+2*i,2)}, {v(XF+2*i,2)}")
    rnd(vX); unp(vX)
    for i in range(4): A(f"v_permlane16_swap_b32 v{vX+i}, v{vX+4+i}")
    A(f"s_lshl_b32 s17, s46, 11")
    A(f"s_add_u32 s17, s17, {WS_X1}")
    A(f"v_and_b32 v3, 15, v2")
    A(f"v_lshlrev_b32 v3, 6, v3")
    A(f"v_lshrrev_b32 v4, 4, v2")
    A(f"v_lshl_add_u32 v3, v4, 4, v3")
    A(f"v_add_u32 v3, s17, v3")
    A(f"global_store_dwordx4 v3, {v(vX,4)}, s[{sWs}:{sWs+1}]{SF}")
    A(f"global_store_dwordx4 v3, {v(vX+4,4)}, s[{sWs}:{sWs+1}] offset:1024{SF}")
    A(f"v_readfirstlane_b32 s21, v{Y}")
    A.nop(2)
    for i in range(16): A(f"v_subrev_f32 v{Y+i}, s21, v{Y+i}")
    cm, rinv = ln_stats(A, Y, 16, S, None, 21, hex(f32_bits(1.0 / 1024)))
    for i in range(8): A(f"v_pk_add_f32 {v(Y+2*i,2)}, {v(Y+2*i,2)}, {v(cm,2)}")
    A("s_waitcnt lgkmcnt(0)")
    for i in range(8): A(f"v_pk_mul_f32 {v(CB+2*i,2)}, {v(CB+2*i,2)}, {v(rinv,2)}")
    for i in range(8): A(f"v_pk_fma_f32 {v(Y+2*i,2)}, {v(Y+2*i,2)}, {v(CB+2*i,2)}, {v(SB+2*i,2)}")
    rnd(PK)
    A(f"s_mul_i32 s17, s47, {HP}")
    A(f"s_add_u32 s17, s17, {LDS_H}")
    A(f"v_add_u32 v3, s17, v5")
    A(f"ds_write_b128 v3, {v(PK,4)}")
    A(f"ds_write_b128 v3, {v(PK+4,4)} offset:16")
    A.label(f"{name}_stage")
    A("s_waitcnt lgkmcnt(0)")
    ST.mark(8)
    A("s_barrier")
    ST.mark(9)
    A(f"s_cmp_eq_u32 s{sWv}, 8")
    A(f"s_cbranch_scc1 {name}_fin")
    A(f"v_and_b32 v3, 7, v2")
    A(f"v_mul_u32_u24 v4, {HP}, v3")
    A(f"v_lshrrev_b32 v5, 3, v2")
    A(f"s_lshl_b32 s17, s{sWv}, 4")
    A(f"v_add_u32 v5, s17, v5")
    A(f"v_lshl_add_u32 v4, v5, 4, v4")
    A(f"v_add_u32 v4, {LDS_H}, v4")
    A(f"ds_read_b128 {v(vD,4)}, v4")
    A(f"ds_read_b128 {v(vD+4,4)}, v4 offset:128")
    A(f"s_lshl_b32 s17, s45, 1")
    A(f"v_add_u32 v6, s17, v3")
    A(f"v_lshrrev_b32 v7, 4, v6")
    A(f"v_lshlrev_b32 v7, 15, v7")
    A(f"v_and_b32 v6, 15, v6")
    A(f"v_lshl_add_u32 v7, v6, 4, v7")
    A(f"v_lshl_add_u32 v7, v5, 8, v7")
    A(f"v_add_u32 v7, {WS_H2F}, v7")
    A("s_waitcnt lgkmcnt(0)")
    A(f"global_store_dwordx4 v7, {v(vD,4)}, s[{sWs}:{sWs+1}]{SF}")
    A(f"global_store_dwordx4 v7, {v(vD+4,4)}, s[{sWs}:{sWs+1}] offset:2048{SF}")
    A.label(f"{name}_fin")
    ST.mark(10)
    ST.dump(f"{name}_end")
    if not stamp: A.label(f"{name}_end")
    A("s_endpgm")
    for e in check_hazards(A.lines, name): print("HAZARD", e)
    return (kernel_header(name) + A.text(), kernel_desc(name, 128, 96, 128),
            f"; @launch kernel={name} grid=({NWG},1,1) block=(576,1,1) lds={lds}")
```

```python
from asmlib import *
from common import *
from sched import Op, resolve
from stamp import Stamper
import math

def gen_gemm3b(name="gemm3_kernel", thin=True, R0=512, even=False, stage_stamps=0, copy_it=0, pretouch=False, early_zero=True, xmap=0, pro_split=True, DT=2, nomfma=False, nodma=False, notok=False, noread=False, stamp=False, noepi=False, prefetch=True, store_flags='', wtouch=True, wd_touch='copy'):
    NW = 4; NT = 4; NL = 14
    NDMA = 8
    U = 4; R = 4; NST = 16; SPS = 2
    SLOT = 32768
    A = Asm()
    ACC0 = 32
    def acc(L, j): return ACC0 + (L * NT + j) * 4
    nacc = NL * NT * 4
    accum_offset = 256
    ar = Regs("a", 0, 256)
    WF = [[ar.alloc(4, 4) for t in range(NL)] for b in range(2)]
    TF = [[[ar.alloc(4, 4) for j in range(NT)] for ks in range(SPS)] for d in range(DT)]
    CP = [ar.alloc(4, 4) for i in range(7)]
    nvgpr = accum_offset + ar.next
    vRd = [[2 + h * 7 + t for t in range(7)] for h in range(2)]
    vDma = 16; vTok = 17; vSt = 19; vLane = 20
    sWsrd = 16; sTsrd = 20; sAsrd = 24
    sW = 28; sT = 29; sM0 = 30; sTmp = 31; sCnt = 32; sWv = 33; sOdd = 38; sSing = 39
    sTj = [56, 57, 58, 59]

    ST = Stamper(A, 3, stamp, sbase=78, sws=8, swv=33, vtmp=2)
    ST.mark()
    A(f"s_cmp_ge_u32 s2, 256")
    A(f"s_cbranch_scc1 {name}_end")
    A(f"s_load_dwordx4 s[4:7], s[0:1], {KARG['wg']}")
    A(f"s_load_dwordx2 s[8:9], s[0:1], {KARG['ws']}")
    A(f"s_load_dwordx2 s[72:73], s[0:1], {KARG['wd']}")
    A(f"v_lshrrev_b32 v1, 6, v0")
    A(f"v_and_b32 v{vLane}, 63, v0")
    A(f"v_readfirstlane_b32 s{sWv}, v1")
    A(f"s_and_b32 s11, s2, 7")
    A(f"s_lshr_b32 s12, s2, 3")
    A(f"s_and_b32 s13, s12, 3")
    A(f"s_lshl_b32 s11, s11, 2")
    A(f"s_add_u32 s13, s13, s11")
    A(f"s_lshr_b32 s14, s2, 5")
    if xmap == 1:
        A(f"s_and_b32 s13, s2, 3")
        A(f"s_lshl_b32 s13, s13, 3")
        A(f"s_and_b32 s14, s12, 7")
        A(f"s_add_u32 s13, s13, s14")
        A(f"s_bfe_u32 s14, s2, 0x10002")
        A(f"s_lshl_b32 s14, s14, 2")
        A(f"s_lshr_b32 s15, s12, 3")
        A(f"s_add_u32 s14, s14, s15")
    A(f"s_and_b32 s{sOdd}, s13, 1")
    A(f"s_lshr_b32 s15, s{sWv}, 1")
    vDma2 = 18
    A(f"v_lshrrev_b32 v2, 4, v{vLane}")
    A(f"v_bfe_u32 v3, v{vLane}, 1, 3")
    A(f"v_mul_u32_u24 v5, 7168, v2")
    A(f"v_and_b32 v6, 1, v{vLane}")
    A(f"v_lshlrev_b32 v6, 4, v6")
    A(f"v_add_u32 v5, v5, v6")
    A(f"v_mov_b32 v7, 0x40000000")
    for (dst, add) in ((vDma, 0), (vDma2, 4)):
        A(f"v_add_u32 v4, {add}, v2")
        A(f"v_xor_b32 v4, v3, v4")
        A(f"v_lshlrev_b32 v6, 5, v4")
        A(f"v_add_u32 v6, v5, v6")
        A(f"v_cmp_eq_u32 vcc, 7, v4")
        A.nop(2)
        A(f"v_cndmask_b32 v{dst}, v6, v7, vcc")
    A(f"v_lshlrev_b32 v{vTok}, 4, v{vLane}")
    A(f"v_mov_b32 v{vSt}, v{vTok}")
    A(f"v_lshrrev_b32 v22, 4, v{vLane}")
    A(f"v_bfe_u32 v24, v{vLane}, 2, 2")
    A(f"v_and_b32 v25, 3, v{vLane}")
    A(f"v_lshl_add_u32 v27, v22, 3, v24")
    A(f"v_lshlrev_b32 v26, 8, v27")
    A(f"v_lshl_add_u32 v26, v25, 3, v26")
    A(f"v_and_b32 v23, 1, v22")
    A(f"v_lshl_add_u32 v27, v23, 2, v24")
    for L in range(7):
        A(f"v_xor_b32 v28, {L}, v27")
        A(f"v_lshl_add_u32 v{vRd[0][L]}, v28, 5, v26")
        A(f"v_add_u32 v{vRd[1][L]}, 0x10000, v{vRd[0][L]}")
    if early_zero:
        for r in range(nacc): A(f"v_mov_b32 v{ACC0+r}, 0")
    A(f"s_waitcnt lgkmcnt(0)")
    A(f"s_cmp_eq_u32 s15, 0")
    A(f"s_cselect_b32 s{sWsrd}, s4, s6")
    A(f"s_cselect_b32 s{sWsrd+1}, s5, s7")
    A(f"s_and_b32 s35, s{sWv}, 1")
    A(f"s_mul_i32 s36, s35, {NDMA*4*7168}")
    A(f"s_mul_i32 s37, s13, 224")
    A(f"s_add_u32 s36, s36, s37")
    A(f"s_add_u32 s{sWsrd}, s{sWsrd}, s36")
    A(f"s_addc_u32 s{sWsrd+1}, s{sWsrd+1}, 0")
    A(f"s_sub_u32 s{sWsrd+2}, {1024*7168}, s36")
    A(f"s_mov_b32 s{sWsrd+3}, 0x20000")
    A(f"s_lshl_b32 s{sM0}, s15, 14")
    A(f"s_mul_i32 s35, s35, {NDMA*1024}")
    A(f"s_add_u32 s{sM0}, s{sM0}, s35")
    A(f"s_lshl_b32 s35, s14, 4")
    A(f"s_lshl_b32 s36, s{sWv}, 2")
    A(f"s_add_u32 s35, s35, s36")
    A(f"s_lshl_b32 s36, s35, 15")
    A(f"s_add_u32 s36, s36, {WS_H2F}")
    A(f"s_add_u32 s{sTsrd}, s8, s36")
    A(f"s_addc_u32 s{sTsrd+1}, s9, 0")
    A(f"s_mov_b32 s{sTsrd+2}, {NT*32768}")
    A(f"s_mov_b32 s{sTsrd+3}, 0x20000")
    A(f"s_lshr_b32 s36, s35, 1")
    A(f"s_mul_i32 s36, s36, 224")
    A(f"s_mul_i32 s37, s13, 7")
    A(f"s_add_u32 s36, s36, s37")
    A(f"s_lshl_b32 s36, s36, 10")
    A(f"s_add_u32 s36, s36, {WS_ACT}")
    A(f"s_add_u32 s{sAsrd}, s8, s36")
    A(f"s_addc_u32 s{sAsrd+1}, s9, 0")
    A(f"s_mov_b32 s{sAsrd+2}, {(224+7)*1024}")
    A(f"s_mov_b32 s{sAsrd+3}, 0x20000")
    if prefetch:
        A(f"s_mul_i32 s74, s2, 28672")
        A(f"s_add_u32 s72, s72, s74")
        A(f"s_addc_u32 s73, s73, 0")
        A(f"s_mov_b32 s74, 28672")
        A(f"s_mov_b32 s75, 0x20000")
        if wd_touch != 'copy': A(f"v_lshlrev_b32 v21, 7, v0")
    A(f"s_cmp_lt_u32 s2, 128")
    A(f"s_cbranch_scc0 {name}_nofl")
    A(f"s_lshl_b32 s76, s2, 7")
    A(f"s_add_u32 s76, s76, 0x20000")
    A(f"v_mov_b32 v30, s76")
    A(f"v_mov_b32 v31, 0")
    A(f"s_mov_b64 exec, 1")
    A(f"global_store_dword v30, v31, s[8:9]")
    A(f"s_mov_b64 exec, -1")
    A.label(f"{name}_nofl")
    if wd_touch == 'copy':
        A(f"s_mul_i32 s76, s{sWv}, 7168")
        A(f"v_lshlrev_b32 v21, 4, v{vLane}")
        A(f"v_add_u32 v21, s76, v21")
        A(f"v_lshrrev_b32 v28, 3, v{vLane}")
        A(f"s_mov_b32 s77, 458752")
        A(f"v_mul_lo_u32 v28, v28, s77")
        A(f"v_and_b32 v31, 7, v{vLane}")
        A(f"v_lshl_add_u32 v28, v31, 4, v28")
        A(f"s_mul_i32 s76, s2, {14*128}")
        A(f"v_add_u32 v1, s76, v28")
        A(f"s_add_u32 s40, s8, {WS_WDT}")
        A(f"s_addc_u32 s41, s9, 0")
        A(f"s_mov_b32 s42, {16*458752}")
        A(f"s_mov_b32 s43, 0x20000")
        A(f"s_mov_b32 s71, 0x10000000")
        for i in range(7):
            A(f"s_mul_i32 s76, s{sWv}, 7")
            A(f"s_add_u32 s76, s76, {i}")
            A(f"s_and_b32 s77, s76, 1")
            A(f"s_mul_i32 s77, s77, {8*458752}")
            A(f"s_lshr_b32 s76, s76, 1")
            A(f"s_lshl_b32 s76, s76, 7")
            A(f"s_add_u32 s{64+i}, s76, s77")
        if not thin:
            A(f"v_min_u32 v0, 55, v{vLane}")
            A(f"v_lshlrev_b32 v0, 7, v0")
            A(f"s_mul_i32 s76, s{sWv}, 7168")
            A(f"v_add_u32 v0, s76, v0")
    if wtouch and not thin:
        A(f"s_lshl_b32 s76, s14, 6")
        A(f"s_add_u32 s76, s76, 512")
        A(f"v_and_b32 v29, 31, v{vLane}")
        A(f"v_add_u32 v29, s76, v29")
        A(f"v_mul_u32_u24 v29, 7168, v29")
        A(f"v_lshrrev_b32 v28, 5, v{vLane}")
        A(f"v_lshl_add_u32 v29, v28, 7, v29")
    if thin:
        RS = (1024 - R0) // 8; RW = RS // 16
        A(f"s_and_b32 s77, s{sWv}, 1")
        A(f"s_lshl_b32 s76, s14, 1")
        A(f"s_add_u32 s76, s76, s77")
        A(f"s_mul_i32 s76, s76, {RW}")
        A(f"s_add_u32 s76, s76, {R0}")
        A(f"s_lshl_b32 s77, s77, 5")
        A(f"s_sub_u32 s76, s76, s77")
        A(f"v_lshrrev_b32 v29, 2, v{vLane}")
        A(f"v_add_u32 v29, s76, v29")
        A(f"v_mul_u32_u24 v29, 7168, v29")
        A(f"v_and_b32 v28, 1, v{vLane}")
        A(f"v_mul_u32_u24 v28, 92, v28")
        A(f"v_add_u32 v29, v29, v28")
        A(f"v_bfe_u32 v28, v{vLane}, 1, 1")
        A(f"v_lshl_add_u32 v29, v28, 7, v29")
        A(f"v_mov_b32 v28, 0x40000000")
        A(f"v_cmp_gt_u32 vcc, {4*RW}, v{vLane}")
        A.nop(2)
        A(f"v_cndmask_b32 v29, v28, v29, vcc")
        A(f"v_lshlrev_b32 v0, 7, v{vLane}")
        A(f"s_mul_i32 s76, s{sWv}, 7168")
        A(f"v_add_u32 v0, s76, v0")
        A(f"v_cmp_gt_u32 vcc, 7, v{vLane}")
        A.nop(2)
        A(f"v_cndmask_b32 v0, v28, v0, vcc")
        A(f"s_mov_b32 s62, 0")
        A(f"s_mov_b32 s63, 0")
    def dma_ops(tag, slot, k):
        o = []
        o.append(Op(f"s_add_u32 m0, s{sM0}, {slot*SLOT + k*1024}"))
        o.append(Op(f"s_add_u32 s{sTmp}, s{sW}, {k*4*7168}"))
        vd = vDma if ((k >> 1) & 1) == 0 else vDma2
        if nodma: o.append(Op("s_nop 0"))
        else: o.append(Op(f"buffer_load_dwordx4 v{vd}, s[{sWsrd}:{sWsrd+3}], s{sTmp} offen lds", vm=tag))
        return o
    def tok_op(ring, ks, j, tag):
        if notok: return Op("s_nop 0")
        return Op(f"buffer_load_dwordx4 {a(TF[ring][ks][j],4)}, v{vTok}, s[{sTsrd}:{sTsrd+3}], s{sTj[j]} offen offset:{ks*1024}", vm=tag)
    def set_T(stage):
        return [Op(f"s_mov_b32 s{sTj[j]}, {j*32768 + stage*2048}") for j in range(NT)]
    def inc_T():
        return [Op(f"s_add_u32 s{sTj[j]}, s{sTj[j]}, 2048") for j in range(NT)]

    pro = []
    pro.append(Op(f"s_mov_b32 s{sW}, 0"))
    late = []
    for st in range(3):
        tgt = pro if (st < 2 or not pro_split) else late
        for k in range(NDMA):
            tgt += dma_ops((lambda it, st=st, k=k: ('W', st, k)), st, k)
        if st == 0:
            pro += set_T(0)
            for ks in range(SPS):
                for j in range(NT):
                    pro.append(tok_op(0, ks, j, (lambda it, ks=ks, j=j: ('T', 0, ks, j))))
        tgt.append(Op(f"s_add_u32 s{sW}, s{sW}, {64*7168}"))
    tgt = late if pro_split else pro
    for d in range(1, DT):
        tgt += set_T(d)
        for ks in range(SPS):
            if d == DT - 1 and ks == SPS - 1: continue
            for j in range(NT):
                tgt.append(tok_op(d, ks, j, (lambda it, d=d, ks=ks, j=j: ('T', d, ks, j))))
    if wtouch and not thin:
        for i, off in enumerate((0, 92)):
            tgt.append(Op(f"buffer_load_dword v30, v29, s[{sWsrd}:{sWsrd+3}], 0 offen offset:{off}", vm=lambda it, i=i: ('PW', i)))
    if not early_zero:
        for r in range(nacc):
            pro.append(Op(f"v_mov_b32 v{ACC0+r}, 0"))
    pro.append(Op(f"s_mov_b32 s{sCnt}, 0"))
    if not nodma:
        pro.append(Op(wait_vm=lambda it: [('W', 0, k) for k in range(NDMA)]))
    pro.append(Op("s_barrier"))
    def rd_ops(buf, slot, ks):
        o = []
        for L in range(7):
            for mx in range(2):
                for q in range(2):
                    if noread: continue
                    o.append(Op(f"ds_read_b64_tr_b16 {a(WF[buf][mx*7+L]+2*q,2)}, v{vRd[slot>>1][L]} offset:{(slot&1)*SLOT + mx*16384 + ks*8192 + q*1024}"))
        return o
    pro += rd_ops(0, 0, 0)
    pro += late

    body = []
    for st in range(U):
        for ks in range(SPS):
            cur = (st * SPS + ks) & 1
            nst, nks = (st, ks + 1) if ks < SPS - 1 else (st + 1, 0)
            pst, pks = (st, ks - 1) if ks > 0 else (st - 1, SPS - 1)
            tk = []
            for j in range(NT):
                tk.append(tok_op((pst % DT), pks, j, (lambda it, pst=pst, pks=pks, j=j: ('T', it * U + pst + DT, pks, j))))
            tkinc = inc_T() if ks == 0 else []
            dm = []
            per = NDMA // SPS
            for k in range(ks * per, (ks + 1) * per):
                dm.append(dma_ops((lambda it, st=st, k=k: ('W', it * U + st + 3, k)), (st + 3) % R, k))
            dmend = [Op(f"s_add_u32 s{sW}, s{sW}, {64*7168}")] if ks == SPS - 1 else []
            rd = rd_ops(cur ^ 1, nst % R, nks)
            head = [Op("s_waitcnt lgkmcnt(0)")]
            if not notok:
                head.append(Op(wait_vm=lambda it, st=st, ks=ks: [('T', it * U + st, ks, j) for j in range(NT)]))
            mf = []
            for L in range(7):
                for mx in range(2):
                    for j in range(NT):
                        if nomfma: mf.append(Op("s_nop 0"))
                        else:
                            LL = mx * 7 + L
                            mf.append(Op(f"v_mfma_f32_16x16x32_bf16 {v(acc(LL,j),4)}, {a(WF[cur][LL],4)}, {a(TF[st%DT][ks][j],4)}, {v(acc(LL,j),4)}"))
            nm = len(mf)
            gaps = [[] for _ in range(nm)]
            if ks == SPS - 1:
                b = []
                if not nodma:
                    b.append(Op(wait_vm=lambda it, st=st: [('W', it * U + st + 1, k) for k in range(NDMA)]))
                b.append(Op("s_barrier"))
                gaps[0] += b
            g = 1
            for o in rd:
                gaps[g].append(o); g += 1
                if g % 7 == 0: g += 1
            holes = [7, 14, 21, 28, 35, 36, 38, 40, 42, 44, 46, 48, 50, 52]
            hi = 0
            for o in tk:
                gaps[holes[hi]].append(o); hi += 1
            gaps[holes[hi]] += tkinc; hi += 1
            for d in dm:
                gaps[holes[hi]] += d; hi += 1
            gaps[holes[hi]] += dmend
            if thin and ks == 0:
                t_ops = []
                if wtouch:
                    t_ops += [Op(f"buffer_load_dword v30, v29, s[{sWsrd}:{sWsrd+3}], s62 offen", vm=lambda it, st=st: ('TW', it, st)),
                              Op(f"s_add_u32 s62, s62, {RS*7168}"), Op(f"s_cmp_eq_u32 s62, {8*RS*7168}"), Op(f"s_cselect_b32 s62, 0x10000000, s62")]
                gaps[50] += t_ops
                if pretouch:
                    gaps[52] += [Op(f"buffer_load_dword v30, v0, s[72:75], s63 offen", vm=lambda it, st=st: ('TD', it, st)),
                                 Op(f"s_add_u32 s63, s63, {7*128}"), Op(f"s_cmp_eq_u32 s63, {8*7*128}"), Op(f"s_cselect_b32 s63, 0x10000000, s63")]
            if prefetch and wd_touch == 'copy' and pretouch and not thin and st in (1, 3) and ks == 0:
                gaps[52] += [Op(f"s_lshl_b32 s76, s{sCnt}, 1"), Op(f"s_add_u32 s76, s76, {(st>>1)}"),
                             Op(f"s_cmp_eq_u32 s76, s{sWv}"), Op(f"s_cselect_b32 s76, 0, 0x10000000"),
                             Op(f"buffer_load_dword v30, v31, s[72:75], s76 offen", vm=lambda it, st=st: ('PT', it, st))] if False else \
                            [Op(f"s_lshl_b32 s76, s{sCnt}, 1"), Op(f"s_add_u32 s76, s76, {(st>>1)}"),
                             Op(f"s_cmp_eq_u32 s76, s{sWv}"), Op(f"s_cselect_b32 s76, 0, 0x10000000"),
                             Op(f"buffer_load_dword v30, v0, s[72:75], s76 offen", vm=lambda it, st=st: ('PT', it, st))]
            if prefetch and wd_touch == 'copy':
                li = {(0, 0): [0], (0, 1): [1], (1, 0): [2], (1, 1): [3], (2, 0): [4], (2, 1): [5], (3, 0): [6]}.get((st, ks), [])
                for i in li:
                    gaps[55] += [Op(f"s_cmp_eq_u32 s{sCnt}, {copy_it}"), Op(f"s_cselect_b32 s76, 0, 0x10000000"), Op(f"s_add_u32 s76, s76, {i*1024}"),
                                 Op(f"buffer_load_dwordx4 {a(CP[i],4)}, v21, s[72:75], s76 offen", vm=lambda it, i=i: ('CL', it, i))]
                    gaps[53] += [Op(f"s_cmp_eq_u32 s{sCnt}, {copy_it+1}"), Op(f"s_cselect_b32 s76, s{64+i}, s71"),
                                 Op(f"buffer_store_dwordx4 {a(CP[i],4)}, v1, s[40:43], s76 offen", vm=lambda it, i=i: ('CS', it, i))]
            if prefetch and wd_touch == 'loop' and st == 1 and ks == 0:
                gaps[54] += [Op(f"s_cmp_eq_u32 s{sCnt}, s{sWv}"), Op(f"s_cselect_b32 s76, 0, 0x10000000"),
                             Op(f"buffer_load_dword v30, v21, s[72:75], s76 offen", vm=lambda it: ('P', it))]
            if prefetch and wd_touch == 'late' and st in (1, 3) and ks == 0:
                gaps[54] += [Op(f"s_lshl_b32 s76, s{sCnt}, 1"), Op(f"s_add_u32 s76, s76, {(st>>1)}"), Op(f"s_sub_u32 s76, s76, 4"),
                             Op(f"s_cmp_eq_u32 s76, s{sWv}"), Op(f"s_cselect_b32 s76, 0, 0x10000000"),
                             Op(f"buffer_load_dword v30, v21, s[72:75], s76 offen", vm=lambda it, st=st: ('P', it, st))]
            if even:
                first = gaps[0][:(2 if (ks == SPS - 1 and not nodma) else (1 if ks == SPS - 1 else 0))]
                rest = [o for g in range(nm) for o in gaps[g]][len(first):]
                rds = [o for o in rest if o.text is not None and o.text.startswith("ds_read")]
                oth = [o for o in rest if not (o.text is not None and o.text.startswith("ds_read"))]
                gaps = [[] for _ in range(nm)]
                gaps[0] = list(first)
                g0 = 1
                for i, o in enumerate(rds): gaps[g0 + i].append(o)
                lo = 6 if len(oth) > 2 * (nm - (g0 + len(rds))) else g0 + len(rds)
                slots = list(range(lo, nm))
                n_real = len([o for o in oth if not (o.text or "").endswith(":")])
                k = 0
                for o in oth:
                    gi = slots[min(len(slots) - 1, k * len(slots) // max(n_real, 1))]
                    gaps[gi].append(o)
                    if not (o.text or "").endswith(":"): k += 1
            body += head
            for g in range(nm):
                body.append(mf[g]); body += gaps[g]
            if stamp and stage_stamps and ks == SPS - 1:
                import os
                op_ = "s_memtime" if os.environ.get("STAMP_CYC") else "s_memrealtime"
                body += [Op(f"s_cmp_eq_u32 s{sCnt}, {stage_stamps-1}"), Op(f"s_cbranch_scc0 {name}_ss{st}"),
                         Op(f"{op_} s[{78+2*(3+st)}:{78+2*(3+st)+1}]"), Op(f"{name}_ss{st}:")]
    body.append(Op(f"s_add_u32 s{sCnt}, s{sCnt}, 1"))
    if stamp:
        import os
        op = "s_memtime" if os.environ.get("STAMP_CYC") else "s_memrealtime"
        for i in (range(1, 6) if not stage_stamps else []):
            body.append(Op(f"s_cmp_eq_u32 s{sCnt}, {i}"))
            body.append(Op(f"s_cbranch_scc0 {name}_sk{i}"))
            body.append(Op(f"{op} s[{78+2*(2+i)}:{78+2*(2+i)+1}]"))
            body.append(Op(f"{name}_sk{i}:"))
    body.append(Op(f"s_cmp_lt_u32 s{sCnt}, {NST//U}"))
    pl, bl, _ = resolve(pro, body, NST // U)
    ST.mark()
    for l in pl: A(l)
    ST.mark()
    A(".p2align 6")
    A.label(f"{name}_loop")
    for l in bl: A(l)
    A(f"s_cbranch_scc1 {name}_loop")
    ST.mark(8)
    if prefetch and wd_touch == 'end':
        A(f"buffer_load_dword v30, v21, s[72:75], 0 offen")
    A.nop(10)
    c0 = -2.0 * math.sqrt(2.0 / math.pi) * math.log2(math.e)
    c1 = c0 * 0.044715
    vC0, vC1, vONE = 2, 4, 6
    for r, val in ((vC0, c0), (vC1, c1), (vONE, 1.0)):
        A(f"v_mov_b32 v{r}, {hex(f32_bits(val))}")
        A(f"v_mov_b32 v{r+1}, {hex(f32_bits(val))}")
    T = 22
    def geglu(tiles):
        n = len(tiles)
        prs = [(g + 2 * p, u + 2 * p) for (g, u) in tiles for p in range(2)]
        for i, (g, u) in enumerate(prs): A(f"v_pk_mul_f32 {v(T+2*i,2)}, {v(g,2)}, {v(g,2)}")
        for i, (g, u) in enumerate(prs): A(f"v_pk_fma_f32 {v(T+2*i,2)}, {v(T+2*i,2)}, {v(vC1,2)}, {v(vC0,2)}")
        for i, (g, u) in enumerate(prs): A(f"v_pk_mul_f32 {v(T+2*i,2)}, {v(T+2*i,2)}, {v(g,2)}")
        for i in range(2 * len(prs)): A(f"v_exp_f32 v{T+i}, v{T+i}")
        for i, (g, u) in enumerate(prs): A(f"v_pk_mul_f32 {v(u,2)}, {v(u,2)}, {v(g,2)}")
        for i, (g, u) in enumerate(prs): A(f"v_pk_add_f32 {v(T+2*i,2)}, {v(T+2*i,2)}, {v(vONE,2)}")
        for i in range(2 * len(prs)): A(f"v_rcp_f32 v{T+i}, v{T+i}")
        A("s_nop 0")
        for i, (g, u) in enumerate(prs): A(f"v_pk_mul_f32 {v(u,2)}, {v(u,2)}, {v(T+2*i,2)}")
        return prs
    if not noepi:
        cnt = 0
        for jp in range(2):
            for L in range(7):
                prs = geglu([(acc(L, 2*jp), acc(7 + L, 2*jp)), (acc(L, 2*jp+1), acc(7 + L, 2*jp+1))])
                o = 8 + 4 * (cnt & 1); cnt += 1
                for i, (g, u) in enumerate(prs): A(f"v_cvt_pk_bf16_f32 v{o+i}, v{u}, v{u+1}")
                A(f"s_mov_b32 s{sTmp}, {(jp*224 + L)*1024}")
                A("s_nop 0")
                A(f"v_permlane16_swap_b32 v{o}, v{o+2}")
                A(f"v_permlane16_swap_b32 v{o+1}, v{o+3}")
                A(f"buffer_store_dwordx4 {v(o,4)}, v{vSt}, s[{sAsrd}:{sAsrd+3}], s{sTmp} offen{store_flags}")
    ST.dump(f"{name}_end")
    if not stamp: A.label(f"{name}_end")
    A("s_endpgm")
    errs = check_hazards(A.lines + bl, name)
    for e in errs: print("HAZARD", e)
    lds = R * SLOT
    text = kernel_header(name) + A.text()
    desc = kernel_desc(name, nvgpr, 102, accum_offset)
    launch = f"; @launch kernel={name} grid=(256,1,1) block=({NW*64},1,1) lds={lds}"
    return text, desc, launch
```

```python
from asmlib import *
from common import *
import os
SF = os.environ.get('SF_GEMM4E', '')
from sched import Op, resolve
from stamp import Stamper

def gen_gemm4e(name="gemm4_kernel", SPS=4, R=4, DT=2, nomfma=False, stamp=False, wdt=True):
    NW = 4; NT = 2; NN = 4; TN = 64
    NST = 3584 // (32 * SPS)
    U = R
    assert NST % U == 0 and U % DT == 0
    ROWB = 128; SLOT = 32 * SPS * ROWB
    RPI = 8
    NDMA = (32 * SPS // RPI) // NW
    A = Asm()
    ACC0 = 32
    def acc(T, j): return ACC0 + (T * NT + j) * 4
    nacc = NN * NT * 4
    vr = Regs("v", ACC0 + nacc, 256)
    WF = [[vr.alloc(4, 4) for t in range(NN)] for b in range(2)]
    TF = [[[vr.alloc(4, 4) for j in range(NT)] for ks in range(SPS)] for d in range(DT)]
    XR = vr.alloc(16, 4)
    GB = vr.alloc(16, 4)
    nvgpr = vr.next; accum_offset = (nvgpr + 3) // 4 * 4
    vRd = [2 + t for t in range(NN)]
    vDma = [16, 17]; vTok = 18; vX = 19; vLane = 20; vOut = [10, 11]
    sWsrd = 16; sTsrd = 20; sOsrd = 24; sXsrd = 40
    sW = 28; sM0 = 30; sTmp = 31; sCnt = 32; sWv = 33; sT = 56
    LDS_GB = R * SLOT
    ST = Stamper(A, 4, stamp, sbase=78, sws=8, swv=33, vtmp=2)
    ST.mark()
    A(f"s_cmp_ge_u32 s2, 256")
    A(f"s_cbranch_scc1 {name}_end")
    A(f"s_load_dwordx2 s[4:5], s[0:1], {KARG['wd']}")
    A(f"s_load_dwordx2 s[6:7], s[0:1], {KARG['out']}")
    A(f"s_load_dwordx2 s[8:9], s[0:1], {KARG['ws']}")
    A(f"v_lshrrev_b32 v1, 6, v0")
    A(f"v_and_b32 v{vLane}, 63, v0")
    A(f"v_readfirstlane_b32 s{sWv}, v1")
    A(f"s_and_b32 s11, s2, 7")
    A(f"s_lshr_b32 s12, s2, 3")
    A(f"s_lshr_b32 s13, s11, 1")
    A(f"s_lshl_b32 s13, s13, 2")
    A(f"s_and_b32 s14, s12, 3")
    A(f"s_add_u32 s13, s13, s14")
    A(f"s_and_b32 s14, s11, 1")
    A(f"s_lshl_b32 s14, s14, 3")
    A(f"s_lshr_b32 s15, s12, 2")
    A(f"s_add_u32 s14, s14, s15")
    A(f"v_lshrrev_b32 v2, 3, v{vLane}")
    A(f"v_bfe_u32 v3, v{vLane}, 1, 2")
    A(f"v_bfe_u32 v4, v{vLane}, 4, 1")
    A(f"v_lshlrev_b32 v5, {7 if wdt else 11}, v2")
    A(f"v_and_b32 v6, 1, v{vLane}")
    A(f"v_lshl_add_u32 v5, v6, 4, v5")
    for e in range(2):
        A(f"v_add_u32 v6, {2*e}, v4")
        A(f"v_xor_b32 v6, v3, v6")
        A(f"v_lshl_add_u32 v{vDma[e]}, v6, 5, v5")
    A(f"v_lshrrev_b32 v22, 4, v{vLane}")
    A(f"v_lshrrev_b32 v23, 1, v22")
    A(f"v_lshlrev_b32 v{vTok}, 10, v23")
    A(f"v_and_b32 v23, 1, v22")
    A(f"v_lshl_add_u32 v{vTok}, v23, 9, v{vTok}")
    A(f"v_and_b32 v29, 15, v{vLane}")
    A(f"v_lshl_add_u32 v{vTok}, v29, 4, v{vTok}")
    A(f"v_bfe_u32 v24, v{vLane}, 2, 2")
    A(f"v_and_b32 v25, 3, v{vLane}")
    A(f"v_lshl_add_u32 v27, v22, 3, v24")
    A(f"v_lshlrev_b32 v26, 7, v27")
    A(f"v_lshl_add_u32 v26, v25, 3, v26")
    A(f"v_lshrrev_b32 v27, 1, v24")
    A(f"v_lshl_add_u32 v27, v23, 1, v27")
    for T in range(NN):
        A(f"v_xor_b32 v28, {T}, v27")
        A(f"v_lshl_add_u32 v{vRd[T]}, v28, 5, v26")
    A(f"v_lshlrev_b32 v30, 5, v23")
    A(f"v_lshrrev_b32 v28, 1, v22")
    A(f"v_lshl_add_u32 v30, v28, 4, v30")
    A(f"v_lshl_add_u32 v{vX}, v29, 11, v30")
    A(f"s_lshl_b32 s35, s13, 7")
    A(f"s_lshl_b32 s36, s{sWv}, 5")
    A(f"s_add_u32 s35, s35, s36")
    for j in range(NT):
        A(f"v_add_u32 v24, s35, v29")
        if j: A(f"v_add_u32 v24, 16, v24")
        A(f"v_lshrrev_b32 v25, 3, v24")
        A(f"v_lshlrev_b32 v25, 2, v25")
        A(f"v_and_b32 v26, 3, v24")
        A(f"v_add_u32 v25, v25, v26")
        A(f"v_sub_u32 v26, 2048, v25")
        A(f"v_and_b32 v27, 4, v24")
        A(f"v_cmp_ne_u32 vcc, 0, v27")
        A.nop(2)
        A(f"v_cndmask_b32 v25, v25, v26, vcc")
        A(f"v_mov_b32 v26, 1024")
        A(f"v_cmp_eq_u32 vcc, 4, v24")
        A.nop(2)
        A(f"v_cndmask_b32 v25, v25, v26, vcc")
        A(f"v_lshl_add_u32 v{vOut[j]}, v25, 11, v30")
    A(f"s_waitcnt lgkmcnt(0)")
    ST.mark()
    PITCH = 128 if wdt else 2048
    if wdt:
        A(f"s_mul_i32 s36, s{sWv}, {NDMA*RPI*128}")
        A(f"s_mul_i32 s37, s14, 458752")
        A(f"s_add_u32 s36, s36, s37")
        A(f"s_add_u32 s36, s36, {WS_WDT}")
        A(f"s_add_u32 s{sWsrd}, s8, s36")
        A(f"s_addc_u32 s{sWsrd+1}, s9, 0")
        A(f"s_mul_i32 s36, s{sWv}, {NDMA*RPI*128}")
        A(f"s_sub_u32 s{sWsrd+2}, 458752, s36")
        A(f"s_mov_b32 s{sWsrd+3}, 0x20000")
    else:
        A(f"s_mul_i32 s36, s{sWv}, {NDMA*RPI*2048}")
        A(f"s_lshl_b32 s37, s14, 7")
        A(f"s_add_u32 s36, s36, s37")
        A(f"s_add_u32 s{sWsrd}, s4, s36")
        A(f"s_addc_u32 s{sWsrd+1}, s5, 0")
        A(f"s_sub_u32 s{sWsrd+2}, {3584*2048}, s36")
        A(f"s_mov_b32 s{sWsrd+3}, 0x20000")
    A(f"s_mul_i32 s{sM0}, s{sWv}, {NDMA*1024}")
    A(f"s_lshl_b32 s38, s13, 2")
    A(f"s_add_u32 s38, s38, s{sWv}")
    A(f"s_mul_i32 s36, s38, {224*1024}")
    A(f"s_add_u32 s36, s36, {WS_ACT}")
    A(f"s_add_u32 s{sTsrd}, s8, s36")
    A(f"s_addc_u32 s{sTsrd+1}, s9, 0")
    A(f"s_mov_b32 s{sTsrd+2}, {224*1024}")
    A(f"s_mov_b32 s{sTsrd+3}, 0x20000")
    A(f"s_lshl_b32 s37, s14, 7")
    A(f"s_add_u32 s{sOsrd}, s6, s37")
    A(f"s_addc_u32 s{sOsrd+1}, s7, 0")
    A(f"s_sub_u32 s{sOsrd+2}, {2048*2048}, s37")
    A(f"s_mov_b32 s{sOsrd+3}, 0x20000")
    A(f"s_lshl_b32 s36, s35, 11")
    A(f"s_add_u32 s36, s36, s37")
    A(f"s_add_u32 s37, s36, {WS_X1}")
    A(f"s_add_u32 s{sXsrd}, s8, s37")
    A(f"s_addc_u32 s{sXsrd+1}, s9, 0")
    A(f"s_sub_u32 s{sXsrd+2}, {2048*2048}, s36")
    A(f"s_mov_b32 s{sXsrd+3}, 0x20000")
    vG = 12
    A(f"s_lshl_b32 s37, s14, 8")
    A(f"s_add_u32 s37, s37, {WS_MODA + 3072*4}")
    A(f"s_add_u32 s44, s8, s37")
    A(f"s_addc_u32 s45, s9, 0")
    A(f"v_lshlrev_b32 v28, 2, v{vLane}")
    A(f"v_add_u32 v29, 16384, v28")
    gb_load = [Op(f"global_load_dword v{vG}, v28, s[44:45]", vm=lambda it: ('G', 0))]
    gb_proc = [Op(wait_vm=lambda it: [('G', 0)])]
    for t in [f"v_cvt_pk_bf16_f32 v{vG}, v{vG}, v{vG}", f"v_and_b32 v{vG}, 0xffff0000, v{vG}",
              f"v_add_u32 v28, {LDS_GB}, v28", f"ds_write_b32 v28, v{vG}", f"s_waitcnt lgkmcnt(0)"]:
        gb_proc.append(Op(t))
    x_load = []
    for j in range(NT):
        for P in range(2):
            x_load.append(Op(f"s_mov_b32 s{sTmp}, {j*16*2048 + P*64}"))
            x_load.append(Op(f"buffer_load_dwordx4 {v(XR+4*(j*2+P),4)}, v{vX}, s[{sXsrd}:{sXsrd+3}], s{sTmp} offen", vm=lambda it, j=j, P=P: ('X', j, P)))
    def dma_ops(tag, slot, k):
        return [Op(f"s_add_u32 m0, s{sM0}, {slot*SLOT + k*1024}"),
                Op(f"s_add_u32 s{sTmp}, s{sW}, {k*RPI*PITCH}"),
                Op(f"buffer_load_dwordx4 v{vDma[k&1]}, s[{sWsrd}:{sWsrd+3}], s{sTmp} offen lds", vm=tag)]
    assert (NDMA % 2) == 0
    def tok_op(ring, ks, j, tag):
        off = ks * 2048 + j * 256
        assert off < 4096 * 2
        if off < 4096:
            return Op(f"buffer_load_dwordx4 {v(TF[ring][ks][j],4)}, v{vTok}, s[{sTsrd}:{sTsrd+3}], s{sT} offen offset:{off}", vm=tag)
        return Op(f"buffer_load_dwordx4 {v(TF[ring][ks][j],4)}, v{vTok2}, s[{sTsrd}:{sTsrd+3}], s{sT} offen offset:{off-4096}", vm=tag)
    vTok2 = 14
    A(f"v_add_u32 v{vTok2}, 4096, v{vTok}")
    STB = 32 * SPS * PITCH
    TSTEP = SPS * 2048
    pro = []
    pro.append(Op(f"s_mov_b32 s{sW}, 0"))
    for st in range(R - 1):
        for k in range(NDMA): pro += dma_ops((lambda it, st=st, k=k: ('W', st, k)), st, k)
        if st < DT:
            pro.append(Op(f"s_mov_b32 s{sT}, {st*TSTEP}"))
            for ks in range(SPS):
                if st == DT - 1 and ks == SPS - 1: continue
                for j in range(NT):
                    pro.append(tok_op(st, ks, j, (lambda it, st=st, ks=ks, j=j: ('T', st, ks, j))))
        if st == 0: pro += gb_load
        pro.append(Op(f"s_add_u32 s{sW}, s{sW}, {STB}"))
    pro += x_load
    for r in range(nacc): pro.append(Op(f"v_mov_b32 v{ACC0+r}, 0"))
    pro += gb_proc
    for P in range(2): pass
    pro.append(Op(f"s_mov_b32 s{sCnt}, 0"))
    pro.append(Op(wait_vm=lambda it: [('W', 0, k) for k in range(NDMA)]))
    pro.append(Op("s_barrier"))
    def rd_ops(buf, slot, ks):
        return [Op(f"ds_read_b64_tr_b16 {v(WF[buf][T]+2*q,2)}, v{vRd[T]} offset:{slot*SLOT + ks*32*ROWB + q*4*ROWB}") for T in range(NN) for q in range(2)]
    pro += rd_ops(0, 0, 0)
    body = []
    for st in range(U):
        for ks in range(SPS):
            cur = (st * SPS + ks) & 1
            nst, nks = (st, ks + 1) if ks < SPS - 1 else (st + 1, 0)
            pst, pks = (st, ks - 1) if ks > 0 else (st - 1, SPS - 1)
            tk = [tok_op((pst % DT), pks, j, (lambda it, pst=pst, pks=pks, j=j: ('T', it * U + pst + DT, pks, j))) for j in range(NT)]
            tkinc = [Op(f"s_add_u32 s{sT}, s{sT}, {TSTEP}")] if ks == 0 else []
            dm = [dma_ops((lambda it, st=st, k=k: ('W', it * U + st + R - 1, k)), (st + R - 1) % R, k) for k in range(NDMA) if k * SPS // NDMA == ks]
            dmend = [Op(f"s_add_u32 s{sW}, s{sW}, {STB}")] if ks == SPS - 1 else []
            rd = rd_ops(cur ^ 1, nst % R, nks)
            head = [Op("s_waitcnt lgkmcnt(0)"), Op(wait_vm=lambda it, st=st, ks=ks: [('T', it * U + st, ks, j) for j in range(NT)])]
            mf = []
            for T in range(NN):
                for j in range(NT):
                    if nomfma: mf.append(Op("s_nop 0"))
                    else: mf.append(Op(f"v_mfma_f32_16x16x32_bf16 {v(acc(T,j),4)}, {v(WF[cur][T],4)}, {v(TF[st%DT][ks][j],4)}, {v(acc(T,j),4)}"))
            nm = len(mf)
            gaps = [[] for _ in range(nm)]
            if ks == SPS - 1:
                gaps[0] += [Op(wait_vm=lambda it, st=st: [('W', it * U + st + 1, k) for k in range(NDMA)]), Op("s_barrier")]
            for i, o in enumerate(rd): gaps[min(i // 2, nm - 1)].append(o)
            gaps[4] += [tk[0]]; gaps[5] += [tk[1]] + tkinc
            for i, d in enumerate(dm): gaps[min(6 + i, nm - 1)] += d
            gaps[nm - 1] += dmend
            body += head
            for g in range(nm):
                body.append(mf[g]); body += gaps[g]
    body.append(Op(f"s_add_u32 s{sCnt}, s{sCnt}, 1"))
    body.append(Op(f"s_cmp_lt_u32 s{sCnt}, {NST//U}"))
    pl, bl, _ = resolve(pro, body, NST // U)
    for l in pl: A(l)
    ST.mark()
    A(".p2align 6")
    A.label(f"{name}_loop")
    for l in bl: A(l)
    A(f"s_cbranch_scc1 {name}_loop")
    ST.mark(8)
    A(f"v_lshrrev_b32 v22, 4, v{vLane}")
    A(f"v_and_b32 v23, 1, v22")
    A(f"v_lshlrev_b32 v23, 6, v23")
    A(f"v_lshrrev_b32 v22, 1, v22")
    A(f"v_lshl_add_u32 v23, v22, 5, v23")
    A(f"v_add_u32 v23, {LDS_GB}, v23")
    for P in range(2):
        A(f"ds_read_b128 {v(GB+8*P,4)}, v23 offset:{P*128}")
        A(f"ds_read_b128 {v(GB+8*P+4,4)}, v23 offset:{P*128+16}")
    A.nop(2)
    for j in range(NT):
        for P in range(2):
            for r in range(4):
                A(f"v_permlane16_swap_b32 v{acc(2*P,j)+r}, v{acc(2*P+1,j)+r}")
    A("s_waitcnt lgkmcnt(0)")
    T0 = 24
    for j in range(NT):
        for P in range(2):
            a0, a1 = acc(2 * P, j), acc(2 * P + 1, j)
            vals = [a0 + r for r in range(4)] + [a1 + r for r in range(4)]
            x = XR + 4 * (j * 2 + P)
            for i in range(4):
                A(f"v_lshlrev_b32 v{T0+i}, 16, v{x+i}")
                A(f"v_and_b32 v{x+i}, 0xffff0000, v{x+i}")
            for i in range(4):
                A(f"v_fma_f32 v{vals[2*i]}, v{vals[2*i]}, v{GB+8*P+2*i}, v{T0+i}")
                A(f"v_fma_f32 v{vals[2*i+1]}, v{vals[2*i+1]}, v{GB+8*P+2*i+1}, v{x+i}")
            for i in range(4): A(f"v_cvt_pk_bf16_f32 v{x+i}, v{vals[2*i]}, v{vals[2*i+1]}")
            A(f"buffer_store_dwordx4 {v(x,4)}, v{vOut[j]}, s[{sOsrd}:{sOsrd+3}], 0 offen offset:{P*64}{SF}")
    ST.dump(f"{name}_end")
    if not stamp: A.label(f"{name}_end")
    A("s_endpgm")
    errs = check_hazards(A.lines + bl, name)
    for e in errs: print("HAZARD", e)
    lds = R * SLOT + 512
    text = kernel_header(name) + A.text()
    desc = kernel_desc(name, nvgpr, 102, accum_offset)
    launch = f"; @launch kernel={name} grid=(256,1,1) block=({NW*64},1,1) lds={lds}"
    return text, desc, launch
```

```python
from asmlib import *
from common import *
import os
SF = os.environ.get('SF_L1', '')
from k_small import *
from stamp import Stamper
from k_gemv import *

def allreduce2(A, r0, r1, t0, t1):
    allreduce64(A, [r0, r1], [t0, t1])

def ln_stats(A, F, n, S, T, sC, inv_n):
    A(f"v_pk_add_f32 {v(S,2)}, {v(F,2)}, {v(F+2,2)}")
    A(f"v_pk_mul_f32 {v(S+2,2)}, {v(F,2)}, {v(F,2)}")
    A(f"v_pk_fma_f32 {v(S+2,2)}, {v(F+2,2)}, {v(F+2,2)}, {v(S+2,2)}")
    for i in range(4, n, 2):
        A(f"v_pk_add_f32 {v(S,2)}, {v(S,2)}, {v(F+i,2)}")
        A(f"v_pk_fma_f32 {v(S+2,2)}, {v(F+i,2)}, {v(F+i,2)}, {v(S+2,2)}")
    A(f"v_add_f32 v{S}, v{S}, v{S+1}")
    A(f"v_add_f32 v{S+1}, v{S+2}, v{S+3}")
    A.nop(1)
    allreduce64(A, [S, S + 1], [S + 2, S + 3])
    A(f"v_mul_f32 v{S}, {inv_n}, v{S}")
    A(f"v_mul_f32 v{S+1}, {inv_n}, v{S+1}")
    A(f"v_fma_f32 v{S+1}, -v{S}, v{S}, v{S+1}")
    A(f"v_max_f32 v{S+1}, 0, v{S+1}")
    A(f"v_add_f32 v{S}, s{sC}, v{S}")
    round_bf16(A, S + 1, S + 1)
    round_bf16(A, S, S)
    A(f"v_add_f32 v{S+1}, {hex(f32_bits(1e-5))}, v{S+1}")
    A(f"v_sub_f32 v{S}, s{sC}, v{S}")
    round_bf16(A, S + 1, S + 1)
    A(f"v_sqrt_f32 v{S+1}, v{S+1}")
    A(f"v_mov_b32 v{S+2}, v{S}")
    round_bf16(A, S + 1, S + 1) if False else None
    A(f"v_cvt_pk_bf16_f32 v{S+1}, v{S+1}, v{S+1}")
    A(f"v_and_b32 v{S+1}, 0xffff0000, v{S+1}")
    A(f"v_rcp_f32 v{S+4}, v{S+1}")
    A(f"v_mov_b32 v{S+3}, v{S}")
    A(f"v_mov_b32 v{S+5}, v{S+4}")
    return S + 2, S + 4

def gen_l1(name="l1_kernel", stamp=False, code_range=None, pf_stride=64, wcopy=True, zero_acc=True):
    A = Asm()
    ST = Stamper(A, 0, stamp, vtmp=60)
    ST.mark()
    vX = 8; vF = 16; vS = 32; vP = 40
    sX, sC, sWm, sWs = 4, 8, 10, 6
    sWv = 12
    PITCH = 2080
    LDS_X = 0
    lds = 18432 + 256
    NWG = 768 if wcopy else 512
    A(f"s_cmp_ge_u32 s2, {NWG}")
    A(f"s_cbranch_scc1 {name}_end")
    A(f"s_load_dwordx2 s[26:27], s[0:1], {KARG['wd']}")
    A(f"s_load_dwordx2 s[{sX}:{sX+1}], s[0:1], {KARG['x']}")
    A(f"s_load_dwordx4 s[{sC}:{sC+3}], s[0:1], {KARG['c']}")
    A(f"s_load_dwordx2 s[{sWs}:{sWs+1}], s[0:1], {KARG['ws']}")
    A(f"v_lshrrev_b32 v1, 6, v0")
    A(f"v_and_b32 v2, 63, v0")
    A(f"v_readfirstlane_b32 s{sWv}, v1")
    A(f"s_and_b32 s13, s2, 7")
    if wcopy:
        A(f"s_cmp_ge_u32 s2, 512")
        A(f"s_cbranch_scc1 {name}_copy")
    A(f"s_cmp_ge_u32 s2, 256")
    A(f"s_cbranch_scc1 {name}_gemv")
    A(f"s_lshr_b32 s14, s2, 3")
    A(f"s_and_b32 s15, s14, 7")
    A(f"s_lshl_b32 s16, s13, 3")
    A(f"s_add_u32 s15, s15, s16")
    A(f"s_lshr_b32 s16, s14, 3")
    A(f"s_lshl_b32 s17, s16, 3")
    A(f"s_add_u32 s17, s17, s{sWv}")
    A(f"s_lshl_b32 s17, s17, 6")
    A(f"s_add_u32 s17, s17, s15")
    A(f"s_lshl_b32 s17, s17, 11")
    A(f"v_lshlrev_b32 v3, 4, v2")
    A(f"v_add_u32 v4, s17, v3")
    A("s_waitcnt lgkmcnt(0)")
    ST.mark()
    A(f"global_load_dwordx4 {v(vX,4)}, v4, s[{sX}:{sX+1}]")
    A(f"global_load_dwordx4 {v(vX+4,4)}, v4, s[{sX}:{sX+1}] offset:1024")
    A(f"s_mul_i32 s18, s{sWv}, {PITCH}")
    A(f"v_add_u32 v5, s18, v3")
    A(f"v_bfe_u32 v6, v2, 4, 1")
    A(f"v_lshlrev_b32 v6, 1, v6")
    A(f"v_lshrrev_b32 v7, 5, v2")
    A(f"v_add_u32 v6, v6, v7")
    A(f"v_bfe_u32 v7, v2, 2, 2")
    A(f"v_mul_u32_u24 v7, {PITCH}, v7")
    A(f"v_lshl_add_u32 v7, v6, 6, v7")
    A(f"v_and_b32 v3, 3, v2")
    A(f"v_lshl_add_u32 v7, v3, 3, v7")
    A(f"s_lshl_b32 s18, s{sWv}, 8")
    A(f"v_add_u32 v7, s18, v7")
    A(f"v_and_b32 v3, 15, v2")
    A(f"v_lshlrev_b32 v3, 14, v3")
    A(f"v_lshl_add_u32 v3, v6, 4, v3")
    A(f"s_lshl_b32 s18, s{sWv}, 19")
    A(f"s_lshr_b32 s20, s15, 3"); A(f"s_lshl_b32 s20, s20, 11"); A(f"s_add_u32 s18, s18, s20")
    A(f"s_lshr_b32 s20, s16, 1"); A(f"s_lshl_b32 s20, s20, 10"); A(f"s_add_u32 s18, s18, s20")
    A(f"s_and_b32 s20, s16, 1"); A(f"s_lshl_b32 s20, s20, 9"); A(f"s_add_u32 s18, s18, s20")
    A(f"s_and_b32 s20, s15, 7"); A(f"s_lshl_b32 s20, s20, 6"); A(f"s_add_u32 s18, s18, s20")
    A(f"s_add_u32 s18, s18, {WS_XNF}")
    A(f"v_add_u32 v3, s18, v3")
    A("s_waitcnt vmcnt(0)")
    ST.mark()
    A(f"v_lshlrev_b32 v{vF}, 16, v{vX}")
    A.nop(1)
    A(f"v_readfirstlane_b32 s21, v{vF}")
    for i in range(8):
        if i > 0: A(f"v_lshlrev_b32 v{vF+2*i}, 16, v{vX+i}")
        A(f"v_and_b32 v{vF+2*i+1}, 0xffff0000, v{vX+i}")
    for i in range(16): A(f"v_subrev_f32 v{vF+i}, s21, v{vF+i}")
    ST.mark()
    cm, rinv = ln_stats(A, vF, 16, vS, None, 21, hex(f32_bits(1.0 / 1024)))
    ST.mark()
    for i in range(8): A(f"v_pk_add_f32 {v(vF+2*i,2)}, {v(vF+2*i,2)}, {v(cm,2)}")
    for i in range(8): A(f"v_cvt_pk_bf16_f32 v{vP+i}, v{vF+2*i}, v{vF+2*i+1}")
    for i in range(8):
        A(f"v_lshlrev_b32 v{vF+2*i}, 16, v{vP+i}")
        A(f"v_and_b32 v{vF+2*i+1}, 0xffff0000, v{vP+i}")
    for i in range(8): A(f"v_pk_mul_f32 {v(vF+2*i,2)}, {v(vF+2*i,2)}, {v(rinv,2)}")
    for i in range(8): A(f"v_cvt_pk_bf16_f32 v{vP+i}, v{vF+2*i}, v{vF+2*i+1}")
    ST.mark()
    A(f"ds_write_b128 v5, {v(vP,4)} offset:{LDS_X}")
    A(f"ds_write_b128 v5, {v(vP+4,4)} offset:{LDS_X+1024}")
    A("s_waitcnt lgkmcnt(0)")
    ST.mark()
    A("s_barrier")
    ST.mark()
    for half in range(2):
        for q in range(2):
            A(f"ds_read_b64_tr_b16 {v(vF+4*half+2*q,2)}, v7 offset:{LDS_X + q*4*PITCH + half*32}")
    for half in range(2):
        A(f"s_waitcnt lgkmcnt({2-2*half})")
        A(f"global_store_dwordx4 v3, {v(vF+4*half,4)}, s[{sWs}:{sWs+1}]{SF}")
        if half == 0: A(f"v_add_u32 v3, {16*16384}, v3")
    ST.mark()
    A(f"s_branch {name}_fin")
    A.label(f"{name}_gemv")
    A(f"s_and_b32 s18, s2, 31")
    A(f"s_lshr_b32 s19, s2, 5")
    A(f"s_and_b32 s19, s19, 7")
    ctx = gemv64x128(A, name, sWs, sC, sWm, sWv, 18, 19, 0, WS_MODP1, 0)
    if code_range is not None:
        lo, hi = code_range
        A(f"s_getpc_b64 s[22:23]")
        A.label(f"{name}_pc")
        A(f"s_add_u32 s22, s22, {lo}-{name}_pc")
        A(f"s_addc_u32 s23, s23, 0")
        A(f"s_lshr_b32 s20, s2, 3")
        A(f"s_and_b32 s20, s20, 31")
        A(f"s_lshl_b32 s20, s20, 5")
        A(f"v_add_u32 v8, s20, v0")
        A(f"v_lshlrev_b32 v8, 6, v8")
        A(f"v_mov_b32 v9, {hi}-{lo}")
        A(f"v_cmp_lt_u32 vcc, v8, v9")
        A(f"v_cmp_gt_u32 s[24:25], 32, v0")
        A.nop(2)
        A(f"s_and_b64 vcc, vcc, s[24:25]")
        A(f"s_and_saveexec_b64 s[24:25], vcc")
        A(f"s_cbranch_execz {name}_nopf")
        A(f"global_load_dword v10, v8, s[22:23]")
        A.label(f"{name}_nopf")
        A(f"s_mov_b64 exec, s[24:25]")
    if zero_acc:
        A(f"s_sub_u32 s20, s2, 256")
        A(f"s_cmp_lt_u32 s20, 8")
        A(f"s_cbranch_scc0 {name}_noz")
        A(f"s_lshl_b32 s20, s20, 11")
        A(f"s_add_u32 s20, s20, {WS_MODA}")
        A(f"v_lshlrev_b32 v8, 2, v0")
        A(f"v_add_u32 v8, s20, v8")
        A(f"v_mov_b32 v9, 0")
        A(f"global_store_dword v8, v9, s[{sWs}:{sWs+1}]")
        A.label(f"{name}_noz")
    A("s_waitcnt vmcnt(0)")
    gemv64x128_fin(A, name, ctx, sWs, sWv, 18, 19, WS_MODP1)
    if wcopy:
        A(f"s_branch {name}_fin")
        A.label(f"{name}_copy")
        A(f"s_sub_u32 s13, s2, 512")
        A(f"s_mul_i32 s14, s13, 28672")
        A(f"v_lshlrev_b32 v3, 4, v2")
        A(f"s_lshl_b32 s15, s{sWv}, 10")
        A(f"s_add_u32 s14, s14, s15")
        A(f"v_add_u32 v3, s14, v3")
        A(f"v_lshrrev_b32 v4, 3, v2")
        A(f"s_mov_b32 s15, 458752")
        A(f"v_mul_lo_u32 v4, v4, s15")
        A(f"v_and_b32 v5, 7, v2")
        A(f"v_lshl_add_u32 v4, v5, 4, v4")
        A(f"s_mul_i32 s14, s13, {14*128}")
        A(f"s_add_u32 s14, s14, {WS_WDT}")
        A(f"s_and_b32 s15, s{sWv}, 1")
        A(f"s_mul_i32 s15, s15, {8*458752}")
        A(f"s_add_u32 s14, s14, s15")
        A(f"s_lshr_b32 s15, s{sWv}, 1")
        A(f"s_lshl_b32 s15, s15, 7")
        A(f"s_add_u32 s14, s14, s15")
        A(f"v_add_u32 v4, s14, v4")
        A("s_waitcnt lgkmcnt(0)")
        A(f"s_cmp_lt_u32 s{sWv}, 4")
        A(f"s_cselect_b32 s16, 1, 0")
        for i in range(3):
            A(f"global_load_dwordx4 {v(8+4*i,4)}, v3, s[26:27]")
            A(f"v_add_u32 v3, 8192, v3")
        A(f"s_cmp_eq_u32 s16, 0")
        A(f"s_cbranch_scc1 {name}_c3")
        A(f"global_load_dwordx4 {v(20,4)}, v3, s[26:27]")
        A("s_waitcnt vmcnt(0)")
        A(f"v_add_u32 v5, {3*4*128}, v4")
        A(f"global_store_dwordx4 v5, {v(20,4)}, s[{sWs}:{sWs+1}]")
        A.label(f"{name}_c3")
        A("s_waitcnt vmcnt(0)") if False else None
        A(f"s_cmp_eq_u32 s16, 0")
        A(f"s_cbranch_scc0 {name}_c4")
        A("s_waitcnt vmcnt(0)")
        A.label(f"{name}_c4")
        for i in range(3):
            A(f"global_store_dwordx4 v4, {v(8+4*i,4)}, s[{sWs}:{sWs+1}]")
            if i < 2: A(f"v_add_u32 v4, {4*128}, v4")
    A.label(f"{name}_fin")
    ST.dump(f"{name}_end")
    if not stamp: A.label(f"{name}_end")
    A("s_endpgm")
    for e in check_hazards(A.lines, name): print("HAZARD", e)
    return (kernel_header(name) + A.text(), kernel_desc(name, 64, 96, 64),
            f"; @launch kernel={name} grid=({NWG},1,1) block=(512,1,1) lds={lds}")
```

```python
from asmlib import *
from common import *
import os
SF = os.environ.get('SF_L2', '')
from k_small import *
from k_gemv import *
from stamp import Stamper

def table_dma(A, sTab, sWv, npieces, nwaves, ldsbase, vLane16, vt):
    n = (npieces + nwaves - 1) // nwaves
    for i in range(n):
        A(f"s_add_u32 s44, s{sWv}, {i*nwaves}")
        A(f"s_min_u32 s44, s44, {npieces-1}")
        A(f"s_lshl_b32 s44, s44, 10")
        A(f"s_add_u32 m0, s44, {ldsbase}")
        A(f"v_add_u32 v{vt}, s44, v{vLane16}")
        A(f"global_load_lds_dwordx4 v{vt}, s[{sTab}:{sTab+1}]")
    return n

def gen_l2(name="l2_kernel", stamp=False, pf_parts=(0, 2), pf_stride=64):
    A = Asm()
    ST = Stamper(A, 1, stamp, vtmp=16)
    ST.mark()
    vX = 8; vW1 = 16; vW3 = 32; vD1 = 64; vTw = 96; vDA = 96; vD3 = 64; vD4 = 80
    vM = 0; vK = 16
    vG = 16; vC = 32; vAcc = 36
    sWs, sC, sWm = 6, 8, 10
    sWv = 12
    PITCH = 272
    LDS_B = 0
    LDS_TAB = 34816
    LDS_G = 0
    LDS_G2 = LDS_G + 16384
    lds = LDS_TAB + 20480
    A(f"s_cmp_ge_u32 s2, 512")
    A(f"s_cbranch_scc1 {name}_end")
    A(f"s_load_dwordx4 s[{sC}:{sC+3}], s[0:1], {KARG['c']}")
    A(f"s_load_dwordx2 s[{sWs}:{sWs+1}], s[0:1], {KARG['ws']}")
    A(f"s_load_dwordx4 s[28:31], s[0:1], {KARG['wg']}")
    A(f"v_lshrrev_b32 v1, 6, v0")
    A(f"v_and_b32 v2, 63, v0")
    A(f"v_readfirstlane_b32 s{sWv}, v1")
    A(f"s_and_b32 s13, s2, 7")
    A(f"s_lshr_b32 s14, s2, 3")
    A(f"v_lshlrev_b32 v3, 4, v2")
    A(f"s_cmp_ge_u32 s2, 256")
    A(f"s_cbranch_scc1 {name}_gemv")
    A(f"s_getpc_b64 s[4:5]")
    A.label(f"{name}_pc")
    A(f"s_add_u32 s4, s4, tab_W1-{name}_pc")
    A(f"s_addc_u32 s5, s5, 0")
    nt = table_dma(A, 4, sWv, 20, 8, LDS_TAB, 3, 4)
    A(f"s_and_b32 s15, s{sWv}, 1")
    A(f"s_lshl_b32 s16, s13, 5")
    A(f"s_add_u32 s16, s16, s14")
    A(f"s_lshl_b32 s16, s16, 14")
    A(f"s_lshl_b32 s17, s{sWv}, 11")
    A(f"s_add_u32 s16, s16, s17")
    A(f"s_add_u32 s16, s16, {WS_XNF}")
    A(f"v_add_u32 v5, s16, v3")
    A(f"v_lshrrev_b32 v6, 5, v2")
    A(f"v_lshlrev_b32 v7, 10, v6")
    A(f"v_bfe_u32 v1, v2, 3, 2")
    A(f"v_lshl_add_u32 v7, v1, 5, v7")
    A(f"s_lshl_b32 s16, s13, 7")
    A(f"s_add_u32 s16, s16, s14")
    A(f"v_add_u32 v7, s16, v7")
    A(f"v_lshlrev_b32 v7, 3, v7")
    A(f"v_and_b32 v1, 7, v2")
    A(f"v_add_u32 v7, v7, v1")
    A(f"v_lshlrev_b32 v7, 2, v7")
    A(f"v_add_u32 v7, {WS_MODP1}, v7")
    A("s_waitcnt lgkmcnt(0)")
    ST.mark()
    A(f"global_load_dwordx4 {v(vX,4)}, v5, s[{sWs}:{sWs+1}]")
    A(f"global_load_dwordx4 {v(vX+4,4)}, v5, s[{sWs}:{sWs+1}] offset:1024")
    A(f"global_load_dword v{vM}, v7, s[{sWs}:{sWs+1}]")
    A(f"v_bfe_u32 v4, v2, 2, 3")
    A(f"s_lshl_b32 s16, s{sWv}, 3")
    A(f"v_add_u32 v4, s16, v4")
    A(f"v_cvt_f32_u32 v5, v4")
    A(f"v_mul_f32 v5, {hex(f32_bits(1.0/2048))}, v5")
    A(f"v_cvt_f32_u32 v7, v6")
    A(f"v_mul_f32 v7, v7, v5")
    A(f"v_mul_f32 v7, 0x41000000, v7")
    for i in range(16):
        A(f"v_fmamk_f32 v{vTw+2*i}, v5, {hex(f32_bits(float(16*(i>>3)+(i&7))))}, v7")
    for i in range(16):
        A(f"v_sin_f32 v{vTw+2*i+1}, v{vTw+2*i}")
        A(f"v_cos_f32 v{vTw+2*i}, v{vTw+2*i}")
    A(f"v_and_b32 v7, 3, v2")
    A(f"v_lshl_add_u32 v7, v6, 5, v7")
    A(f"v_mul_u32_u24 v7, 68, v7")
    A(f"v_add_u32 v7, v7, v4")
    A(f"v_lshlrev_b32 v7, 2, v7")
    A(f"v_and_b32 v5, 31, v2")
    A(f"s_lshr_b32 s16, s{sWv}, 1")
    A(f"s_lshl_b32 s17, s16, 5")
    A(f"v_add_u32 v5, s17, v5")
    A(f"v_mul_u32_u24 v5, {PITCH}, v5")
    A(f"v_lshl_add_u32 v5, v6, 4, v5")
    A(f"s_lshl_b32 s17, s13, 5")
    A(f"s_add_u32 s17, s17, s14")
    A(f"s_mul_i32 s17, s17, {ZCH}")
    A(f"s_add_u32 s17, s17, {WS_ZF}")
    A(f"s_lshr_b32 s16, s{sWv}, 1")
    A(f"s_lshl_b32 s16, s16, 7")
    A(f"s_lshl_b32 s20, s15, 13")
    A(f"s_add_u32 s16, s16, s20")
    A(f"s_add_u32 s16, s16, s17")
    A(f"v_and_b32 v4, 15, v2")
    A(f"v_lshlrev_b32 v4, 9, v4")
    A(f"v_bfe_u32 v1, v2, 4, 1")
    A(f"v_lshl_add_u32 v4, v1, 5, v4")
    A(f"v_lshl_add_u32 v4, v6, 4, v4")
    A(f"v_add_u32 v4, s16, v4")
    A(f"s_lshl_b32 s16, s15, 13")
    A(f"s_add_u32 s16, s16, {LDS_TAB + 4096}")
    A(f"v_add_u32 v1, s16, v3")
    A("s_waitcnt vmcnt(3)")
    A("s_barrier")
    for f in range(4):
        A(f"ds_read_b128 {v(vW1+4*f,4)}, v3 offset:{LDS_TAB + f*1024}")
    for f in range(8):
        A(f"ds_read_b128 {v(vW3+4*f,4)}, v1 offset:{f*1024}")
    A("s_waitcnt vmcnt(0)")
    ST.mark()
    A("s_waitcnt lgkmcnt(8)")
    for mt in range(2):
        A(f"v_mfma_f32_32x32x16_bf16 {v(vD1+16*mt,16)}, {v(vW1+8*mt,4)}, {v(vX,4)}, 0")
    for mt in range(2):
        A(f"v_mfma_f32_32x32x16_bf16 {v(vD1+16*mt,16)}, {v(vW1+8*mt+4,4)}, {v(vX+4,4)}, {v(vD1+16*mt,16)}")
    for ctrl in ("quad_perm:[1,0,3,2]", "quad_perm:[2,3,0,1]", "row_half_mirror"):
        A(f"v_add_f32_dpp v{vM}, v{vM}, v{vM} {ctrl} row_mask:0xf bank_mask:0xf")
        A.nop(2)
    round_bf16(A, vM, vM)
    A(f"v_add_f32 v{vM+1}, 1.0, v{vM}")
    round_bf16(A, vM + 1, vM + 1)
    A(f"v_mul_f32 v{vM}, 0x45000000, v{vM}")
    A.nop(1)
    for i in range(4):
        A(f"v_readlane_b32 s{24+i}, v{vM}, {8*i}")
        A(f"v_readlane_b32 s{32+i}, v{vM+1}, {32+8*i}")
    for mt in range(2):
        for q in range(8):
            i = mt * 8 + q
            d = vD1 + 16 * mt + 2 * q
            t = vX + 2 * (q & 3)
            A(f"v_pk_mul_f32 {v(t,2)}, {v(d,2)}, {v(vTw+2*i,2)} op_sel:[0,0] op_sel_hi:[1,0]")
            A(f"v_pk_fma_f32 {v(t,2)}, {v(d,2)}, {v(vTw+2*i,2)}, {v(t,2)} op_sel:[1,1,0] op_sel_hi:[0,1,1] neg_hi:[1,0,0]")
            A(f"v_cvt_pk_bf16_f32 v{t}, v{t}, v{t+1}")
            A(f"ds_write_b32 v7, v{t} offset:{LDS_B + (16*mt+q)*4*PITCH}")
    for p in range(4): A(f"v_mov_b32 v{vK+p}, {'0x00003f80' if p % 2 == 0 else '0x0000bf80'}")
    A("s_waitcnt lgkmcnt(0)")
    A("s_barrier")
    ST.mark()
    for kt in range(8):
        A(f"ds_read_b128 {v(vDA+4*kt,4)}, v5 offset:{LDS_B + kt*32}")
    for kt in range(8):
        A(f"s_waitcnt lgkmcnt({7-kt})")
        cin = "0" if kt == 0 else v(vD3, 16)
        A(f"v_mfma_f32_32x32x16_bf16 {v(vD3,16)}, {v(vDA+4*kt,4)}, {v(vW3+4*kt,4)}, {cin}")
    A(f"s_cmp_eq_u32 s{sWv}, 0")
    A(f"s_cbranch_scc0 {name}_no1024")
    for kt in range(8):
        cin = "0" if kt == 0 else v(vD4, 16)
        A(f"v_mfma_f32_32x32x16_bf16 {v(vD4,16)}, {v(vDA+4*kt,4)}, {v(vK,4)}, {cin}")
    A.label(f"{name}_no1024")
    A(f"s_cmp_eq_u32 s{sWv}, 0")
    A(f"s_cselect_b32 s20, 1, 0")
    A(f"s_mov_b32 s21, 0")
    A(f"s_mov_b64 vcc, s[20:21]")
    for i in range(4):
        A(f"v_mov_b32 v{vX+i}, s{24+i}")
        A(f"v_cndmask_b32 v{vX+i}, 0, v{vX+i}, vcc")
    A.nop(4)
    for r in range(16):
        if r < 4: A(f"v_fma_f32 v{vD3+r}, v{vD3+r}, s{32+(r&3)}, v{vX+r}")
        else: A(f"v_mul_f32 v{vD3+r}, s{32+(r&3)}, v{vD3+r}")
    for RP in range(2):
        o = vX + 4 * RP
        for k, R in enumerate((2 * RP, 2 * RP + 1)):
            A(f"v_cvt_pk_bf16_f32 v{o+2*k}, v{vD3+4*R}, v{vD3+4*R+1}")
            A(f"v_cvt_pk_bf16_f32 v{o+2*k+1}, v{vD3+4*R+2}, v{vD3+4*R+3}")
    A.nop(1)
    for RP in range(2):
        o = vX + 4 * RP
        A(f"v_permlane16_swap_b32 v{o}, v{o+2}")
        A(f"v_permlane16_swap_b32 v{o+1}, v{o+3}")
        A(f"global_store_dwordx4 v4, {v(o,4)}, s[{sWs}:{sWs+1}] offset:{RP*64}{SF}")
    ST.mark()
    A(f"s_cmp_eq_u32 s{sWv}, 0")
    A(f"s_cbranch_scc0 {name}_fin")
    for i in range(4): A(f"v_mul_f32 v{vD4+i}, s{32+i}, v{vD4+i}")
    A(f"v_cvt_pk_bf16_f32 v{vD4}, v{vD4}, v{vD4+1}")
    A(f"v_cvt_pk_bf16_f32 v{vD4+1}, v{vD4+2}, v{vD4+3}")
    A(f"v_cmp_eq_u32 vcc, 0, v2")
    A(f"v_mov_b32 v{vD4+2}, 0")
    A(f"v_mov_b32 v{vD4+3}, 0")
    A(f"v_cndmask_b32 v{vD4}, 0, v{vD4}, vcc")
    A(f"v_cndmask_b32 v{vD4+1}, 0, v{vD4+1}, vcc")
    A(f"v_lshlrev_b32 v4, 4, v2")
    A(f"s_add_u32 s16, s17, {1024*16}")
    A(f"v_add_u32 v4, s16, v4")
    A(f"s_mov_b64 exec, 0xf")
    A(f"global_store_dwordx4 v4, {v(vD4,4)}, s[{sWs}:{sWs+1}]")
    A(f"s_mov_b64 exec, -1")
    A(f"s_branch {name}_fin")
    A.label(f"{name}_gemv")
    A(f"s_and_b32 s18, s14, 7")
    A(f"s_lshl_b32 s20, s13, 3")
    A(f"s_add_u32 s18, s18, s20")
    A(f"s_lshr_b32 s19, s2, 6")
    A(f"s_and_b32 s19, s19, 3")
    A(f"v_lshrrev_b32 v4, 3, v0")
    A(f"s_lshl_b32 s20, s19, 8")
    A(f"v_add_u32 v4, s20, v4")
    A(f"v_lshlrev_b32 v5, 1, v4")
    A(f"v_mul_u32_u24 v4, 12288, v4")
    A(f"v_and_b32 v6, 7, v0")
    A(f"v_lshl_add_u32 v4, v6, 4, v4")
    A(f"s_lshl_b32 s20, s18, 7")
    A(f"s_add_u32 s20, s20, 4096")
    A(f"v_add_u32 v4, s20, v4")
    A("s_waitcnt lgkmcnt(0)")
    for i in range(4):
        A(f"global_load_ushort v{vC+i}, v5, s[{sC}:{sC+1}] offset:{i*128}")
    for i in range(4):
        A(f"global_load_dwordx4 {v(vG+4*i,4)}, v4, s[{sWm}:{sWm+1}]")
        if i < 3: A(f"v_add_u32 v4, {64*12288}, v4")
    A(f"s_waitcnt vmcnt(4)")
    for i in range(4): silu_bf16(A, vC + i, 5)
    A(f"s_waitcnt vmcnt(0)")
    for i in range(4):
        for d in range(4):
            w = vG + 4 * i + d
            A(f"v_lshlrev_b32 v5, 16, v{w}")
            A(f"v_and_b32 v{w}, 0xffff0000, v{w}")
            op = "v_mul_f32" if i == 0 else "v_fmac_f32"
            A(f"{op} v{vAcc+2*d}, v{vC+i}, v5")
            A(f"{op} v{vAcc+2*d+1}, v{vC+i}, v{w}")
    A(f"v_lshlrev_b32 v5, 5, v0")
    A(f"v_add_u32 v5, {LDS_G}, v5")
    A(f"ds_write_b128 v5, {v(vAcc,4)}")
    A(f"ds_write_b128 v5, {v(vAcc+4,4)} offset:16")
    A(f"s_lshl_b32 s20, s{sWv}, 11")
    A(f"s_add_u32 s20, s20, {LDS_G}")
    A(f"v_lshlrev_b32 v5, 2, v2")
    A(f"v_add_u32 v5, s20, v5")
    A("s_waitcnt lgkmcnt(0)")
    for g in range(8): A(f"ds_read_b32 v{vAcc+g}, v5 offset:{g*256}")
    A("s_waitcnt lgkmcnt(0)")
    for (x, y) in ((0, 1), (2, 3), (4, 5), (6, 7), (0, 2), (4, 6), (0, 4)):
        A(f"v_add_f32 v{vAcc+x}, v{vAcc+x}, v{vAcc+y}")
    A(f"v_lshlrev_b32 v5, 2, v0")
    A(f"v_add_u32 v5, {LDS_G2}, v5")
    A(f"ds_write_b32 v5, v{vAcc}")
    A("s_waitcnt lgkmcnt(0)")
    A("s_barrier")
    A(f"s_cmp_eq_u32 s{sWv}, 0")
    A(f"s_cbranch_scc0 {name}_fin")
    for g in range(8): A(f"ds_read_b32 v{vAcc+g}, v5 offset:{g*256}")
    A("s_waitcnt lgkmcnt(0)")
    for (x, y) in ((0, 1), (2, 3), (4, 5), (6, 7), (0, 2), (4, 6), (0, 4)):
        A(f"v_add_f32 v{vAcc+x}, v{vAcc+x}, v{vAcc+y}")
    A(f"s_lshl_b32 s20, s18, 8")
    A(f"s_add_u32 s20, s20, {WS_MODA}")
    A(f"v_lshlrev_b32 v5, 2, v2")
    A(f"v_add_u32 v5, s20, v5")
    A(f"global_atomic_add_f32 v5, v{vAcc}, s[{sWs}:{sWs+1}]")
    A.label(f"{name}_fin")
    ST.dump(f"{name}_end")
    if not stamp: A.label(f"{name}_end")
    A("s_endpgm")
    for e in check_hazards(A.lines, name): print("HAZARD", e)
    return (kernel_header(name) + A.text(), kernel_desc(name, 128, 96, 128),
            f"; @launch kernel={name} grid=(512,1,1) block=(512,1,1) lds={lds}")
```

```python
from asmlib import *
from common import *
import os
SF = os.environ.get('SF_L3', '')
from k_small import *
from k_l1 import ln_stats
from stamp import Stamper
from k_gemv import *
from k_l2 import table_dma

def gen_l3(name="l3_kernel", stamp=False, pf_rows=256, special_first=False):
    A = Asm()
    ST = Stamper(A, 2, stamp, vtmp=8, two=True)
    ST.mark()
    vZ = 8
    vW4 = 24
    vW5 = 24
    vT = 40
    vS = 48
    vDum = 55
    vD = 56
    vE = 56
    vTw = 88
    vX = 120
    vP = 56
    vL16 = 0
    sWs, sX = 6, 4
    sTab = 24
    sWv = 12
    MODB = 5120
    LDS_TAB = 0
    LDS_MOD = 12288
    LDS_T = LDS_MOD + 3 * MODB
    LDS_Y = LDS_T + 5 * 4608
    YB = 3072
    LDS_Z = LDS_Y + 5 * YB
    lds = LDS_Z + 16384
    LDS_H = LDS_T
    HP = 2080
    NWG = 256
    A(f"s_cmp_ge_u32 s2, {NWG}")
    A(f"s_cbranch_scc1 {name}_end")
    if special_first:
        A(f"s_sub_u32 s3, s2, 1")
        A(f"s_cmp_eq_u32 s2, 0")
        A(f"s_cselect_b32 s2, 256, s3")
    A(f"s_load_dwordx2 s[{sWs}:{sWs+1}], s[0:1], {KARG['ws']}")
    A(f"s_load_dwordx2 s[{sX}:{sX+1}], s[0:1], {KARG['x']}")
    A(f"s_load_dwordx4 s[28:31], s[0:1], {KARG['wg']}")
    A(f"s_getpc_b64 s[{sTab}:{sTab+1}]")
    A.label(f"{name}_pc")
    A(f"s_add_u32 s{sTab}, s{sTab}, tab_W4-{name}_pc")
    A(f"s_addc_u32 s{sTab+1}, s{sTab+1}, 0")
    A(f"v_lshrrev_b32 v1, 6, v0")
    A(f"v_and_b32 v2, 63, v0")
    A(f"v_readfirstlane_b32 s{sWv}, v1")
    A(f"v_lshlrev_b32 v3, 4, v2")
    A(f"s_cmp_eq_u32 s{sWv}, 8")
    A(f"s_cbranch_scc0 {name}_notw8")
    A(f"s_cmp_eq_u32 s2, 0")
    A(f"s_cbranch_scc0 {name}_end")
    A(f"v_lshrrev_b32 v6, 5, v2")
    A(f"v_and_b32 v7, 31, v2")
    A(f"v_lshlrev_b32 v5, 6, v7")
    A(f"v_lshl_add_u32 v5, v6, 5, v5")
    A(f"s_mov_b32 s13, 1024")
    A(f"s_mov_b32 s14, 1")
    A(f"s_mov_b32 s45, 0")
    A(f"v_mul_u32_u24 v4, {ZCH}, v2")
    A(f"v_add_u32 v4, {WS_ZF + 1024*16}, v4")
    A("s_waitcnt lgkmcnt(0)")
    for kt in range(4):
        A(f"global_load_dwordx4 {v(vZ+4*kt,4)}, v4, s[{sWs}:{sWs+1}]")
        if kt < 3: A(f"v_add_u32 v4, {64*ZCH}, v4")
    A(f"s_mov_b32 s47, 4")
    A(f"s_branch {name}_rolea")
    A.label(f"{name}_notw8")
    nt = table_dma(A, sTab, sWv, 12, 8, LDS_TAB, 3, 4)
    A(f"v_lshrrev_b32 v6, 5, v2")
    A(f"v_and_b32 v7, 31, v2")
    A(f"v_lshlrev_b32 v5, 6, v7")
    A(f"v_lshl_add_u32 v5, v6, 5, v5")
    A(f"s_and_b32 s13, s2, 7")
    A(f"s_lshl_b32 s13, s13, 5")
    A(f"s_lshr_b32 s14, s2, 3")
    A(f"s_add_u32 s13, s13, s14")
    A(f"s_cmp_eq_u32 s2, 256")
    A(f"s_cselect_b32 s13, 256, s13")
    A(f"s_lshl_b32 s13, s13, 2")
    A(f"s_mov_b32 s45, s13")
    A(f"s_and_b32 s17, s{sWv}, 3")
    A(f"s_add_u32 s13, s13, s17")
    A(f"s_cmp_le_u32 s13, 1024")
    A(f"s_cselect_b32 s14, 1, 0")
    A(f"s_min_u32 s13, s13, 1024")
    A(f"v_lshrrev_b32 v4, 2, v2")
    A(f"s_lshl_b32 s18, s{sWv}, 5")
    A(f"v_add_u32 v4, s18, v4")
    A(f"v_mul_u32_u24 v4, {ZCH}, v4")
    A(f"v_lshrrev_b32 v1, 2, v2")
    A(f"v_xor_b32 v1, v1, v2")
    A(f"v_and_b32 v1, 3, v1")
    A(f"v_lshl_add_u32 v4, v1, 4, v4")
    A(f"s_and_b32 s17, s{sWv}, 3")
    A(f"s_sub_u32 s18, s44, s17") if False else None
    A(f"s_lshl_b32 s18, s45, 4")
    A(f"s_add_u32 s18, s18, {WS_ZF}")
    A(f"v_add_u32 v4, s18, v4")
    A(f"s_lshl_b32 s18, s{sWv}, 11")
    A("s_waitcnt lgkmcnt(0)")
    ST.mark(1)
    A(f"s_add_u32 m0, s18, {LDS_Z}")
    A("s_nop 0")
    A(f"global_load_lds_dwordx4 v4, s[{sWs}:{sWs+1}]")
    A(f"s_add_u32 m0, s18, {LDS_Z + 1024}")
    A(f"v_add_u32 v4, {16*ZCH}, v4")
    A(f"global_load_lds_dwordx4 v4, s[{sWs}:{sWs+1}]")
    A(f"s_mov_b32 s47, s{sWv}")
    A(f"s_cmp_ge_u32 s{sWv}, 4")
    A(f"s_cbranch_scc1 {name}_roleb")
    A.label(f"{name}_rolea")
    A(f"s_lshl_b32 s17, s13, 11")
    A(f"v_add_u32 v{vE+3}, s17, v5")
    A(f"v_mov_b32 v{vL16}, v3")
    A(f"global_load_dwordx4 {v(vX,4)}, v{vE+3}, s[{sX}:{sX+1}]")
    A(f"global_load_dwordx4 {v(vX+4,4)}, v{vE+3}, s[{sX}:{sX+1}] offset:16")
    A(f"v_cvt_f32_u32 v{vE}, v7")
    A(f"v_mul_f32 v{vE}, {hex(f32_bits(1.0/1024))}, v{vE}")
    A(f"v_cvt_f32_u32 v{vE+1}, v6")
    A(f"v_mul_f32 v{vE+1}, v{vE+1}, v{vE}")
    A(f"v_mul_f32 v{vE+1}, 0x41000000, v{vE+1}")
    for i in range(16):
        A(f"v_fmamk_f32 v{vTw+2*i}, v{vE}, {hex(f32_bits(float(16*(i>>3)+(i&7))))}, v{vE+1}")
    for i in range(16):
        A(f"v_sin_f32 v{vTw+2*i+1}, v{vTw+2*i}")
        A(f"v_cos_f32 v{vTw+2*i}, v{vTw+2*i}")
    A(f"s_mul_i32 s17, s47, 4608")
    A(f"s_add_u32 s17, s17, {LDS_T}")
    A(f"v_mul_u32_u24 v{vE}, {8*144}, v6")
    A(f"v_lshl_add_u32 v{vE}, v7, 2, v{vE}")
    A(f"v_add_u32 v3, s17, v{vE}")
    A(f"v_bfe_u32 v{vE}, v7, 2, 1")
    A(f"v_lshlrev_b32 v{vE}, 4, v{vE}")
    A(f"v_lshrrev_b32 v{vE+1}, 3, v7")
    A(f"v_lshl_add_u32 v{vE}, v{vE+1}, 2, v{vE}")
    A(f"v_and_b32 v{vE+1}, 3, v7")
    A(f"v_add_u32 v{vE}, v{vE}, v{vE+1}")
    A(f"v_mul_u32_u24 v{vE}, 144, v{vE}")
    A(f"v_lshl_add_u32 v{vE}, v6, 4, v{vE}")
    A(f"v_add_u32 v4, s17, v{vE}")
    A(f"v_lshl_add_u32 v1, v7, 1, v6")
    A(f"v_mul_u32_u24 v1, 80, v1")
    A(f"s_and_b32 s17, s{sWv}, 3")
    A(f"v_xor_b32 v{vE}, s17, v2")
    A(f"v_and_b32 v{vE}, 3, v{vE}")
    A(f"v_lshlrev_b32 v{vE}, 4, v{vE}")
    A(f"v_lshl_add_u32 v{vE}, v2, 6, v{vE}")
    A(f"v_add_u32 v{vE}, {LDS_Z}, v{vE}")
    ST.mark(2)
    A("s_waitcnt vmcnt(2)")
    ST.mark(3)
    A("s_barrier")
    ST.mark(4)
    A(f"s_cmp_eq_u32 s{sWv}, 8")
    A(f"s_cbranch_scc1 {name}_nozr")
    for kt in range(4):
        A(f"ds_read_b128 {v(vZ+4*kt,4)}, v{vE} offset:{kt*4096}")
    A.label(f"{name}_nozr")
    for f in range(8):
        A(f"ds_read_b128 {v(vW4+4*f,4)}, v{vL16} offset:{LDS_TAB + f*1024}")
    A("s_waitcnt lgkmcnt(0)")
    ST.mark(5)
    for kt in range(4):
        for mt in range(2):
            cin = "0" if kt == 0 else v(vD + 16 * mt, 16)
            A(f"v_mfma_f32_32x32x16_bf16 {v(vD+16*mt,16)}, {v(vW4+16*mt+4*kt,4)}, {v(vZ+4*kt,4)}, {cin}")
    A.nop(6)
    for f in range(4):
        A(f"ds_read_b128 {v(vW5+4*f,4)}, v{vL16} offset:{LDS_TAB + 8192 + f*1024}")
    A.nop(2)
    for mt in range(2):
        for q in range(8):
            i = mt * 8 + q
            d = vD + 16 * mt + 2 * q
            t = vZ + 2 * (q & 3)
            A(f"v_pk_mul_f32 {v(t,2)}, {v(d,2)}, {v(vTw+2*i,2)} op_sel:[0,0] op_sel_hi:[1,0]")
            A(f"v_pk_fma_f32 {v(t,2)}, {v(d,2)}, {v(vTw+2*i,2)}, {v(t,2)} op_sel:[1,1,0] op_sel_hi:[0,1,1] neg_hi:[1,0,0]")
            A(f"v_cvt_pk_bf16_f32 v{t}, v{t}, v{t+1}")
            A(f"ds_write_b32 v3, v{t} offset:{(16*mt+q)*144}")
    A("s_waitcnt lgkmcnt(0)")
    for kt in range(4):
        A(f"ds_read_b128 {v(vTw+4*kt,4)}, v4 offset:{kt*32}")
    for kt in range(4):
        A(f"s_waitcnt lgkmcnt({3-kt})")
        cin = "0" if kt == 0 else v(vD, 16)
        A(f"v_mfma_f32_32x32x16_bf16 {v(vD,16)}, {v(vTw+4*kt,4)}, {v(vW5+4*kt,4)}, {cin}")
    A(f"s_mul_i32 s17, s47, {YB}")
    A(f"s_add_u32 s17, s17, {LDS_Y}")
    A(f"v_lshl_add_u32 v3, v7, 1, v6")
    A(f"v_mul_u32_u24 v3, 48, v3")
    A(f"v_add_u32 v3, s17, v3")
    A.nop(10)
    for i in range(8): A(f"v_cvt_pk_bf16_f32 v{vT+i}, v{vD+2*i}, v{vD+2*i+1}")
    A(f"ds_write_b128 v3, {v(vT,4)}")
    A(f"ds_write_b128 v3, {v(vT+4,4)} offset:16")
    for i in range(8):
        A(f"v_lshlrev_b32 v{vD+2*i}, 16, v{vT+i}")
        A(f"v_and_b32 v{vD+2*i+1}, 0xffff0000, v{vT+i}")
    A("s_waitcnt lgkmcnt(0)")
    ST.mark(6)
    A("s_barrier")
    ST.mark(7)
    A(f"s_mov_b32 s15, s13")
    A(f"s_mov_b32 s16, s14")
    A("s_waitcnt vmcnt(0)")
    A(f"s_branch {name}_row")
    A.label(f"{name}_roleb")
    A(f"v_subrev_u32 v3, 256, v0")
    A(f"v_lshlrev_b32 v4, 4, v3")
    A(f"v_add_u32 v4, {WS_MODA}, v4")
    A(f"s_sub_u32 s15, 2048, s13")
    A(f"s_and_b32 s15, s15, 2047")
    A(f"s_and_b32 s16, s13, 1023")
    A(f"s_cmp_lg_u32 s16, 0")
    A(f"s_cselect_b32 s16, s14, 0")
    A(f"s_lshl_b32 s17, s15, 11")
    A(f"v_add_u32 v1, s17, v5")
    for vv in range(3):
        A(f"v_add_u32 v{vT}, {vv*4096}, v4")
        A(f"global_load_dwordx4 {v(vP+4*vv,4)}, v{vT}, s[{sWs}:{sWs+1}]")
    A(f"global_load_dwordx4 {v(vX,4)}, v1, s[{sX}:{sX+1}]")
    A(f"global_load_dwordx4 {v(vX+4,4)}, v1, s[{sX}:{sX+1}] offset:16")
    ST.mark(2)
    A(f"s_waitcnt vmcnt(5)")
    ST.mark(3)
    A("s_barrier")
    ST.mark(4)
    npf = 0
    if pf_rows:
        rpw = pf_rows // 32 // 2
        nin = (rpw + 7) // 8
        A(f"s_and_b32 s40, s2, 7")
        A(f"s_mul_i32 s40, s40, 896")
        A(f"s_lshr_b32 s41, s2, 3")
        A(f"s_min_u32 s41, s41, 31")
        A(f"s_lshl_b32 s41, s41, 1")
        A(f"s_and_b32 s42, s{sWv}, 1")
        A(f"s_add_u32 s41, s41, s42")
        A(f"s_mul_i32 s41, s41, {rpw*7168}")
        A(f"s_add_u32 s40, s40, s41")
        A(f"s_bitcmp1_b32 s{sWv}, 1")
        A(f"s_cselect_b32 s42, s30, s28")
        A(f"s_cselect_b32 s43, s31, s29")
        A(f"v_lshrrev_b32 v{vT}, 3, v2")
        A(f"v_min_u32 v{vT}, {min(rpw,8)-1}, v{vT}")
        A(f"v_mul_u32_u24 v{vT}, 7168, v{vT}")
        A(f"v_and_b32 v{vT+1}, 7, v2")
        A(f"v_min_u32 v{vT+1}, 6, v{vT+1}")
        A(f"v_lshl_add_u32 v{vT}, v{vT+1}, 7, v{vT}")
        A(f"v_add_u32 v{vT}, s40, v{vT}")
        for i in range(nin):
            A(f"global_load_dword v{vDum}, v{vT}, s[42:43]")
            if i < nin - 1: A(f"v_add_u32 v{vT}, {8*7168}, v{vT}")
        npf = nin
    A(f"s_waitcnt vmcnt({2+npf})")
    ST.mark(5)
    for i in range(12): round_bf16(A, vP + i, vP + i)
    for i in range(4):
        A(f"v_add_f32 v{vP+8+i}, 1.0, v{vP+8+i}")
        round_bf16(A, vP + 8 + i, vP + 8 + i)
    A(f"v_lshrrev_b32 v4, 2, v3")
    A(f"v_mul_u32_u24 v4, 80, v4")
    A(f"v_and_b32 v{vT+1}, 3, v3")
    A(f"v_lshl_add_u32 v4, v{vT+1}, 4, v4")
    for vv in range(3):
        A(f"ds_write_b128 v4, {v(vP+4*vv,4)} offset:{LDS_MOD + vv*MODB}")
    A(f"v_lshl_add_u32 v1, v7, 1, v6")
    A(f"s_and_b32 s17, s{sWv}, 3")
    A(f"s_mul_i32 s17, s17, {YB}")
    A(f"s_add_u32 s17, s17, {LDS_Y}")
    A(f"v_sub_u32 v3, 63, v1")
    A(f"v_mul_u32_u24 v3, 48, v3")
    A(f"v_add_u32 v3, s17, v3")
    A(f"v_sub_u32 v4, 64, v1")
    A(f"v_and_b32 v4, 63, v4")
    A(f"v_mul_u32_u24 v4, 48, v4")
    A(f"v_add_u32 v4, s17, v4")
    A(f"v_mul_u32_u24 v1, 80, v1")
    A("s_waitcnt lgkmcnt(0)")
    ST.mark(6)
    A("s_barrier")
    ST.mark(7)
    YT = vD + 16
    A(f"ds_read_b128 {v(YT,4)}, v3")
    A(f"ds_read_b128 {v(YT+4,4)}, v3 offset:16")
    A(f"ds_read_b32 v{vD}, v4")
    A(f"s_waitcnt vmcnt({npf}) lgkmcnt(0)")
    A(f"v_lshlrev_b32 v{vD}, 16, v{vD}")
    for k in range(8):
        if k > 0: A(f"v_lshlrev_b32 v{vD+16-2*k}, 16, v{YT+k}")
        A(f"v_and_b32 v{vD+16-(2*k+1)}, 0xffff0000, v{YT+k}")
    A.label(f"{name}_row")
    A(f"s_lshl_b32 s46, s45, 1")
    A(f"s_add_u32 s46, s46, s47")
    A(f"s_cmp_eq_u32 s16, 0")
    A(f"s_cbranch_scc1 {name}_stage")
    GA, CB, SB = vTw, vTw + 16, vZ
    for base, vec in ((GA, 0), (CB, 2), (SB, 1)):
        for qd in range(4):
            A(f"ds_read_b128 {v(base+4*qd,4)}, v1 offset:{LDS_MOD + vec*MODB + qd*16}")
    Y = vD; PK = vT; S = vS; XF = vD + 16
    def rnd(dst_pk):
        for i in range(8): A(f"v_cvt_pk_bf16_f32 v{dst_pk+i}, v{Y+2*i}, v{Y+2*i+1}")
    def unp(src_pk):
        for i in range(8):
            A(f"v_lshlrev_b32 v{Y+2*i}, 16, v{src_pk+i}")
            A(f"v_and_b32 v{Y+2*i+1}, 0xffff0000, v{src_pk+i}")
    for i in range(8):
        A(f"v_lshlrev_b32 v{XF+2*i}, 16, v{vX+i}")
        A(f"v_and_b32 v{XF+2*i+1}, 0xffff0000, v{vX+i}")
    A("s_waitcnt lgkmcnt(8)")
    for i in range(8): A(f"v_pk_fma_f32 {v(Y+2*i,2)}, {v(Y+2*i,2)}, {v(GA+2*i,2)}, {v(XF+2*i,2)}")
    rnd(vX); unp(vX)
    for i in range(4): A(f"v_permlane16_swap_b32 v{vX+i}, v{vX+4+i}")
    A(f"s_lshl_b32 s17, s46, 11")
    A(f"s_add_u32 s17, s17, {WS_X1}")
    A(f"v_and_b32 v3, 15, v2")
    A(f"v_lshlrev_b32 v3, 6, v3")
    A(f"v_lshrrev_b32 v4, 4, v2")
    A(f"v_lshl_add_u32 v3, v4, 4, v3")
    A(f"v_add_u32 v3, s17, v3")
    A(f"global_store_dwordx4 v3, {v(vX,4)}, s[{sWs}:{sWs+1}]{SF}")
    A(f"global_store_dwordx4 v3, {v(vX+4,4)}, s[{sWs}:{sWs+1}] offset:1024{SF}")
    A(f"v_readfirstlane_b32 s21, v{Y}")
    A.nop(2)
    for i in range(16): A(f"v_subrev_f32 v{Y+i}, s21, v{Y+i}")
    cm, rinv = ln_stats(A, Y, 16, S, None, 21, hex(f32_bits(1.0 / 1024)))
    for i in range(8): A(f"v_pk_add_f32 {v(Y+2*i,2)}, {v(Y+2*i,2)}, {v(cm,2)}")
    A("s_waitcnt lgkmcnt(0)")
    for i in range(8): A(f"v_pk_mul_f32 {v(CB+2*i,2)}, {v(CB+2*i,2)}, {v(rinv,2)}")
    for i in range(8): A(f"v_pk_fma_f32 {v(Y+2*i,2)}, {v(Y+2*i,2)}, {v(CB+2*i,2)}, {v(SB+2*i,2)}")
    rnd(PK)
    A(f"s_mul_i32 s17, s47, {HP}")
    A(f"s_add_u32 s17, s17, {LDS_H}")
    A(f"v_add_u32 v3, s17, v5")
    A(f"ds_write_b128 v3, {v(PK,4)}")
    A(f"ds_write_b128 v3, {v(PK+4,4)} offset:16")
    A.label(f"{name}_stage")
    A("s_waitcnt lgkmcnt(0)")
    ST.mark(8)
    A("s_barrier")
    ST.mark(9)
    A(f"s_cmp_eq_u32 s{sWv}, 8")
    A(f"s_cbranch_scc1 {name}_fin")
    A(f"v_and_b32 v3, 7, v2")
    A(f"v_mul_u32_u24 v4, {HP}, v3")
    A(f"v_lshrrev_b32 v5, 3, v2")
    A(f"s_lshl_b32 s17, s{sWv}, 4")
    A(f"v_add_u32 v5, s17, v5")
    A(f"v_lshl_add_u32 v4, v5, 4, v4")
    A(f"v_add_u32 v4, {LDS_H}, v4")
    A(f"ds_read_b128 {v(vD,4)}, v4")
    A(f"ds_read_b128 {v(vD+4,4)}, v4 offset:128")
    A(f"s_lshl_b32 s17, s45, 1")
    A(f"v_add_u32 v6, s17, v3")
    A(f"v_lshrrev_b32 v7, 4, v6")
    A(f"v_lshlrev_b32 v7, 15, v7")
    A(f"v_and_b32 v6, 15, v6")
    A(f"v_lshl_add_u32 v7, v6, 4, v7")
    A(f"v_lshl_add_u32 v7, v5, 8, v7")
    A(f"v_add_u32 v7, {WS_H2F}, v7")
    A("s_waitcnt lgkmcnt(0)")
    A(f"global_store_dwordx4 v7, {v(vD,4)}, s[{sWs}:{sWs+1}]{SF}")
    A(f"global_store_dwordx4 v7, {v(vD+4,4)}, s[{sWs}:{sWs+1}] offset:2048{SF}")
    A.label(f"{name}_fin")
    ST.mark(10)
    ST.dump(f"{name}_end")
    if not stamp: A.label(f"{name}_end")
    A("s_endpgm")
    for e in check_hazards(A.lines, name): print("HAZARD", e)
    return (kernel_header(name) + A.text(), kernel_desc(name, 128, 96, 128),
            f"; @launch kernel={name} grid=({NWG},1,1) block=(576,1,1) lds={lds}")
```
